```python
import torch

def _softmax(x, axis=-1):
    return torch.softmax(x, dim=axis)
def _gelu(x):
    return torch.nn.functional.gelu(x, approximate="tanh")
def _silu(x):
    return torch.nn.functional.silu(x)
def _sigmoid(x):
    return torch.sigmoid(x)
def _layernorm(x, axis=-1, eps=1e-5):
    m = x.mean(dim=axis, keepdim=True)
    v = x.var(dim=axis, keepdim=True, unbiased=False)
    return (x - m) / torch.sqrt(v + eps)
def _scatter_add(tgt, idx, src, axis=0):
    return tgt.clone().index_add_(axis, idx, src)
def _segment_sum(src, seg, n):
    out = torch.zeros((n,) + src.shape[1:], dtype=src.dtype)
    return out.index_add_(0, seg, src)
def _pad(x, pw):
    flat = tuple(v for pair in reversed(pw) for v in pair)
    return torch.nn.functional.pad(x, flat)

kernel_name = 'sequential_preLN__linear_attn_block__dense_activation_mish__prompt'

def setup_inputs():

    _w = (lambda a: (lambda t: t.to(torch.bfloat16) if t.is_floating_point() else t)(torch.as_tensor(a)))
    def _A_setup():
        B, S, D = 1, 2048, 512
        return {
            "x": _w((lambda *s: torch.randn(*s, dtype=torch.bfloat16) * 0.05)(B, S, D)),
            "wqkv": _w((lambda *s: torch.randn(*s, dtype=torch.bfloat16) * 0.05)(D, 3 * D)),
            "wo": _w((lambda *s: torch.randn(*s, dtype=torch.bfloat16) * 0.05)(D, D)),
        }
    _A_in = _A_setup()

    def _B_setup():
        B, S, D, F = 1, 2048, 512, 1376
        return {
            "x": _w((lambda *s: torch.randn(*s, dtype=torch.bfloat16) * 0.05)(B, S, D)),
            "w1": _w((lambda *s: torch.randn(*s, dtype=torch.bfloat16) * 0.8)(D, F) * (D ** -0.5)),
            "b1": _w((lambda *s: torch.randn(*s, dtype=torch.bfloat16) * 0.2)(F)),
            "w2": _w((lambda *s: torch.randn(*s, dtype=torch.bfloat16) * 0.1)(F, D) * (F ** -0.5)),
        }
    _B_in = _B_setup()

    return {
        "A_x": _A_in["x"],
        "A_wqkv": _A_in["wqkv"],
        "A_wo": _A_in["wo"],
        "B_x": _B_in["x"],
        "B_w1": _B_in["w1"],
        "B_b1": _B_in["b1"],
        "B_w2": _B_in["w2"],
    }

def reference(A_x, A_wqkv, A_wo, B_x, B_w1, B_b1, B_w2):
    def _A_ref(x, wqkv, wo):
        B, S, D = x.shape
        H = 32; Dh = D // H
        qkv = (lambda x, *d: x.permute(*d))((x @ wqkv).reshape(B, S, 3, H, Dh), 2, 0, 3, 1, 4)
        q, k, v = qkv[0], qkv[1], qkv[2]
        phi = lambda t: torch.where(t > 0, t + 1, torch.exp(t)) + 1e-6
        pq, pk = phi(q), phi(k)
        kv = torch.einsum("bhsd,bhse->bhde", pk, v)
        z = torch.einsum("bhsd->bhd", pk)
        num = torch.einsum("bhqd,bhde->bhqe", pq, kv)
        den = torch.einsum("bhqd,bhd->bhq", pq, z)[..., None] + 1e-6
        o = num / den
        return (lambda x, *d: x.permute(*d))(o, 0, 2, 1, 3).reshape(B, S, D) @ wo

    def _B_ref(x, w1, b1, w2):
        h = torch.einsum("bsd,df->bsf", x, w1) + b1
        sp = torch.log1p(torch.exp(-torch.abs(h))) + torch.where(h > 0, h, torch.zeros_like(h))
        act = h * torch.tanh(sp)
        return torch.einsum("bsf,fd->bsd", act, w2)

    x = A_x
    h = x + _A_ref(_layernorm(x, axis=-1), A_wqkv, A_wo)
    h2 = h + _B_ref(_layernorm(h, axis=-1), B_w1, B_b1, B_w2)
    return h2
```

```python
import re

TRANS = ("v_exp_f32", "v_log_f32", "v_rcp_f32", "v_rsq_f32", "v_sqrt_f32", "v_sin_f32", "v_cos_f32")

def _regs(tok, kind):
    tok = tok.strip()
    tok = tok.lstrip("-")
    if tok.startswith("abs(") or tok.startswith("|"):
        tok = tok.replace("abs(", "").replace(")", "").replace("|", "")
    m = re.fullmatch(kind + r"(\d+)", tok)
    if m: return {int(m.group(1))}
    m = re.fullmatch(kind + r"\[(\d+):(\d+)\]", tok)
    if m: return set(range(int(m.group(1)), int(m.group(2)) + 1))
    if kind == "s" and tok == "vcc": return {106, 107}
    return set()

class Ins:
    __slots__ = ("text", "op", "ops", "vw", "vr", "sw", "sr", "kind", "mf_c", "mf_ab", "states")
    def __init__(self, text):
        self.text = text
        body = text.split(";")[0].strip()
        parts = body.split(None, 1)
        self.op = parts[0]
        rest = parts[1] if len(parts) > 1 else ""
        ops = []; cur = ""; depth = 0
        for ch in rest:
            if ch == "[": depth += 1
            if ch == "]": depth -= 1
            if ch == "," and depth == 0: ops.append(cur.strip()); cur = ""
            else: cur += ch
        if cur.strip(): ops.append(cur.strip())
        if ops:
            last = ops[-1].split()
            ops[-1] = last[0]
            self_mods = last[1:]
        else: self_mods = []
        self.ops = ops
        op = self.op
        self.vw = set(); self.vr = set(); self.sw = set(); self.sr = set()
        self.mf_c = set(); self.mf_ab = set()
        self.states = 1
        if op == "s_nop": self.kind = "nop"; self.states = int(ops[0], 0) + 1
        elif op.startswith("v_mfma"):
            self.kind = "mfma"
            self.vw = _regs(ops[0], "v"); self.mf_ab = _regs(ops[1], "v") | _regs(ops[2], "v"); self.mf_c = _regs(ops[3], "v")
            self.vr = self.mf_ab | self.mf_c
        elif op.startswith("buffer_load") or op.startswith("global_load"):
            self.kind = "vmem_ld"; self.vw = _regs(ops[0], "v"); self.vr = _regs(ops[1], "v")
            for o in ops[2:]: self.sr |= _regs(o, "s")
        elif op.startswith("buffer_store") or op.startswith("buffer_atomic"):
            self.kind = "vmem_st"; self.vr = _regs(ops[0], "v") | _regs(ops[1], "v")
            for o in ops[2:]: self.sr |= _regs(o, "s")
        elif op.startswith("ds_read") or op.startswith("ds_bpermute") or op.startswith("ds_swizzle"):
            self.kind = "ds_ld"; self.vw = _regs(ops[0], "v")
            for o in ops[1:]: self.vr |= _regs(o, "v")
        elif op.startswith("ds_write") or op.startswith("ds_add"):
            self.kind = "ds_st"
            for o in ops: self.vr |= _regs(o, "v")
        elif op.startswith("v_"):
            self.kind = "valu"
            if op.startswith("v_cmp"):
                self.sw = _regs(ops[0], "s")
                for o in ops[1:]: self.vr |= _regs(o, "v"); self.sr |= _regs(o, "s")
            elif op.startswith("v_readfirstlane") or op.startswith("v_readlane"):
                self.sw = _regs(ops[0], "s"); self.vr = _regs(ops[1], "v")
            elif op.startswith("v_permlane"):
                self.vw = _regs(ops[0], "v") | _regs(ops[1], "v"); self.vr = set(self.vw)
            else:
                self.vw = _regs(ops[0], "v")
                for o in ops[1:]: self.vr |= _regs(o, "v"); self.sr |= _regs(o, "s")
                if op.startswith("v_fmac") or op.startswith("v_dot2c"): self.vr |= self.vw
                if op.startswith("v_cndmask") and len(ops) == 3: self.sr |= {106, 107}
        elif op.startswith("s_"):
            self.kind = "salu"
        else:
            self.kind = "other"

class Asm:
    def __init__(self):
        self.items = []
        self.nlab = 0
        self.vmq = []
        self.lgq = []
    def __call__(self, s, tag=None, track=True):
        for ln in s.strip("\n").split("\n"):
            ln = ln.strip()
            if not ln or ln.startswith(";"): continue
            if ln.endswith(":") and " " not in ln: self.label(ln[:-1]); continue
            ins = Ins(ln)
            self.items.append(ins)
            if ins.kind in ("vmem_ld", "vmem_st"):
                if track: self.vmq.append(tag)
            elif ins.kind in ("ds_ld", "ds_st"):
                if track: self.lgq.append(tag)
            elif ins.op == "s_waitcnt":
                m = re.search(r"vmcnt\((\d+)\)", ln)
                if m:
                    n = int(m.group(1)); self.vmq = self.vmq[len(self.vmq) - n:] if n < len(self.vmq) else self.vmq
                    if n == 0: self.vmq = []
                m = re.search(r"lgkmcnt\((\d+)\)", ln)
                if m:
                    n = int(m.group(1)); self.lgq = self.lgq[len(self.lgq) - n:] if n < len(self.lgq) else self.lgq
                    if n == 0: self.lgq = []
    def raw(self, s): self.items.append(s)
    def label(self, name): self.items.append(name + ":")
    def newlabel(self, p="L"):
        self.nlab += 1
        return f"{p}_{self.nlab}"
    def wait_vm(self, tag):
        idx = [k for k, t in enumerate(self.vmq) if t == tag]
        if not idx: return
        n = len(self.vmq) - 1 - idx[-1]
        assert n <= 63
        self(f"s_waitcnt vmcnt({n})")
    def wait_lg(self, tag):
        idx = [k for k, t in enumerate(self.lgq) if t == tag]
        if not idx: return
        n = len(self.lgq) - 1 - idx[-1]
        if n > 15: n = 15
        self(f"s_waitcnt lgkmcnt({n})")
    def finalize(self):
        out = []
        hist = []
        pos = 0
        def need(ins):
            req = 0
            for (p, ppos) in reversed(hist):
                dist = pos - ppos - p.states
                if dist >= 20: break
                n = 0
                if p.kind == "valu":
                    if ins.kind == "mfma" and (p.vw & ins.vr): n = max(n, 2)
                    if p.op.replace("_e32", "").replace("_e64", "") in TRANS and ins.kind == "valu" and (p.vw & (ins.vr | ins.vw)): n = max(n, 1)
                    if p.sw:
                        if ins.kind == "valu" and (p.sw & ins.sr): n = max(n, 2)
                        if ins.kind in ("vmem_ld", "vmem_st") and (p.sw & ins.sr): n = max(n, 5)
                    if (ins.op.startswith("v_readfirstlane") or ins.op.startswith("v_readlane")) and (p.vw & ins.vr): n = max(n, 1)
                    if ins.op.startswith("v_permlane") and (p.vw & ins.vr): n = max(n, 2)
                    if "dpp" in ins.op and (p.vw & ins.vr): n = max(n, 2)
                    if p.op.startswith("v_dot") and (p.vw & (ins.vr | ins.vw)) and ins.op != p.op: n = max(n, 3)
                if p.kind == "mfma":
                    if ins.kind == "mfma":
                        if p.vw & ins.mf_ab: n = max(n, 8)
                        if p.vw & ins.mf_c:
                            if not (p.vw == ins.mf_c and p.op == ins.op): n = max(n, 6)
                        elif p.vw & ins.vw: n = max(n, 8)
                    elif ins.kind in ("valu", "vmem_ld", "vmem_st", "ds_ld", "ds_st"):
                        if p.vw & (ins.vr | ins.vw): n = max(n, 8)
                        if ins.kind == "valu" and (p.mf_c & ins.vw): n = max(n, 3)
                if p.kind == "vmem_st" and ("x4" in p.op or "x3" in p.op):
                    data = _regs(p.ops[0], "v")
                    if data & ins.vw: n = max(n, 2 if ins.kind == "valu" else 1)
                req = max(req, n - dist)
            return req
        for it in self.items:
            if isinstance(it, str):
                out.append(it); continue
            r = need(it)
            while r > 0:
                k = min(r, 16)
                nop = Ins(f"s_nop {k-1}")
                out.append(nop); hist.append((nop, pos)); pos += nop.states; r -= k
            out.append(it); hist.append((it, pos)); pos += it.states
            if len(hist) > 40: hist = hist[-40:]
        return out
    def text(self):
        lines = []
        for it in self.finalize():
            lines.append(it if isinstance(it, str) else "    " + it.text)
        return "\n".join(lines) + "\n"
```

```python
import sys
from asmgen import Asm
KNAME = "sequential_preLN__linear_attn_block__dense_activation_mish__prompt_kernel"
STAMPS = "--stamps" in sys.argv
OUTF = [a for a in sys.argv[1:] if not a.startswith("--")][0]

FLAGS = 0; KVP = 0x40000; OFR = 0x200000; HFR = 0x400000; AFR = 0x600000; STAMP = 0x1000000
XB = 0; YB = 98304; ZB = 159744; ZCS = ZB; ZKV = ZB + 1024
S_X, S_WQKV, S_WO, S_W1, S_B1, S_W2, S_OUT, S_DBG, S_WS = 8, 12, 16, 20, 24, 28, 32, 36, 40
sC, sJ, sW = 44, 45, 46
sT0, sT1, sT2, sT3, sT4, sT5 = 47, 48, 49, 50, 51, 52
sMT, sKH, sMW = 53, 54, 55
sP0 = 56
sSELLO, sSELHI, sONES = 60, 61, 62
sEX = 58
sPOLL = 57
def srd(b): return f"s[{b}:{b+3}]"
vTID, vL16, vRDA, vRDB, vRDC, vRDX, vRDY, vZERO = 0, 1, 2, 3, 4, 5, 6, 7
vWA = 8
vGO = 16
vS1, vS2, vTMP = 17, 18, 19
vKEEP = 20
vRING = 24
vACC = 56
vE = 80
vA = 104
vRAW1 = 208
vRAW2 = 176
vOV = 240
vB1 = 168
def vr(b, n): return f"v[{b}:{b+n-1}]"

a = Asm()
nstamp = [0]
def stamp():
    if not STAMPS: return
    n = nstamp[0]; nstamp[0] += 1
    a(f"s_waitcnt lgkmcnt(0)\ns_memrealtime s[{64+2*n}:{65+2*n}]\ns_waitcnt lgkmcnt(0)")

hdr = open("sequential_preLN__linear_attn_block__dense_activation_mish__prompt.s.ref").read().split("; @launch")[0]
a.raw(hdr + "; @launch grid=(256,1,1) block=(512,1,1) lds=163840")
a.raw(f'.amdgcn_target "amdgcn-amd-amdhsa--gfx950"\n.text\n.globl {KNAME}\n.p2align 8\n.type {KNAME},@function')
a.label(KNAME)
a(f"""
s_cmp_ge_u32 s2, 256
s_cbranch_scc1 L_end
s_load_dwordx4 s[64:67], s[0:1], 0
s_load_dwordx2 s[68:69], s[0:1], 16
s_load_dwordx4 s[72:75], s[0:1], 32
s_load_dwordx4 s[76:79], s[0:1], 48
s_load_dwordx4 s[80:83], s[0:1], 64
s_and_b32 s3, s2, 7
s_lshl_b32 s3, s3, 1
s_lshr_b32 s4, s2, 7
s_add_u32 s{sC}, s3, s4
s_lshr_b32 s{sJ}, s2, 3
s_and_b32 s{sJ}, s{sJ}, 15
v_lshrrev_b32 v{vTMP}, 6, v0
v_and_b32 v{vE}, 63, v0
v_readfirstlane_b32 s{sW}, v{vTMP}
s_mov_b32 s{sSELLO}, 0x05040100
s_mov_b32 s{sSELHI}, 0x07060302
s_mov_b32 s{sONES}, 0x3f803f80
v_mov_b32 v{vZERO}, 0
v_lshlrev_b32 v{vL16}, 4, v{vE}
v_and_b32 v{vE+1}, 15, v{vE}          ; i
v_lshrrev_b32 v{vE+2}, 4, v{vE}       ; g / hi
v_and_b32 v{vE+3}, 3, v{vE}           ; cb
v_bfe_u32 v{vE+4}, v{vE}, 2, 2        ; rv
; rd = (g*16 + (i ^ ((i>>3) | ((g&1)<<1))))*16
v_lshrrev_b32 v{vE+5}, 3, v{vE+1}
v_and_b32 v{vE+6}, 1, v{vE+2}
v_lshl_or_b32 v{vE+5}, v{vE+6}, 1, v{vE+5}
v_xor_b32 v{vE+5}, v{vE+5}, v{vE+1}
v_lshl_add_u32 v{vE+5}, v{vE+2}, 4, v{vE+5}
v_lshlrev_b32 v{vRDA}, 4, v{vE+5}
v_add_u32 v{vRDB}, 0x10000, v{vRDA}
v_add_u32 v{vRDC}, 0x20000, v{vRDA}
v_xor_b32 v{vRDX}, 64, v{vRDA}
v_add_u32 v{vRDY}, 0x10000, v{vRDX}
s_and_b32 s{sMW}, s{sW}, 3
s_lshr_b32 s{sKH}, s{sW}, 2
s_lshl_b32 s{sMT}, s{sC}, 3
s_lshr_b32 s{sT0}, s{sJ}, 3
s_lshl_b32 s{sT0}, s{sT0}, 2
s_add_u32 s{sMT}, s{sMT}, s{sT0}
s_add_u32 s{sMT}, s{sMT}, s{sMW}
s_mul_i32 s{sP0}, s{sJ}, 3
s_lshl_b32 s{sT0}, s{sJ}, 1
s_add_u32 s{sT0}, s{sT0}, 11
s_cmp_lt_u32 s{sJ}, 11
s_cselect_b32 s{sP0}, s{sP0}, s{sT0}
s_waitcnt lgkmcnt(0)
""")
def mk_srd(b, lo, nbytes):
    a(f"s_mov_b32 s{b}, s{lo}\ns_and_b32 s{b+1}, s{lo+1}, 0xffff\ns_mov_b32 s{b+2}, {nbytes}\ns_mov_b32 s{b+3}, 0x00020000")
mk_srd(S_WQKV, 66, 512*1536*2)
mk_srd(S_X, 64, 2048*512*2)
mk_srd(S_WO, 68, 512*512*2)
mk_srd(S_W1, 72, 512*1376*2)
mk_srd(S_B1, 74, 1376*2)
mk_srd(S_W2, 76, 1376*512*2)
mk_srd(S_OUT, 78, 2048*512*2)
mk_srd(S_DBG, 80, 256)
mk_srd(S_WS, 82, 0x10000000)
stamp()
L, I, G, CB, RV = vE, vE+1, vE+2, vE+3, vE+4

a(f"""
s_cmp_lg_u32 s{sW}, 0
s_cbranch_scc1 L_noreset
s_lshl_b32 s{sT0}, s{sJ}, 4
s_add_u32 s{sT0}, s{sT0}, s{sC}          ; j*16+c
s_lshl_b32 s{sT1}, s{sC}, 4
s_add_u32 s{sT1}, s{sT1}, s{sJ}          ; c*16+j
v_lshrrev_b32 v{vE+6}, 1, v{L}           ; k
v_lshlrev_b32 v{vE+7}, 8, v{vE+6}
v_add_u32 v{vE+7}, s{sT1}, v{vE+7}
v_mov_b32 v{vE+8}, s{sT0}
v_cmp_eq_u32 vcc, 0, v{vE+6}
v_cndmask_b32 v{vE+7}, v{vE+7}, v{vE+8}, vcc
v_lshlrev_b32 v{vE+7}, 7, v{vE+7}
v_and_b32 v{vE+8}, 1, v{L}
v_lshl_add_u32 v{vE+7}, v{vE+8}, 4, v{vE+7}
v_mov_b32 v{vE+8}, 0
v_mov_b32 v{vE+9}, 0
v_mov_b32 v{vE+10}, 0
v_mov_b32 v{vE+11}, 0
s_mov_b64 s[{sEX}:{sEX+1}], exec
s_mov_b64 exec, 0xff
""")
a(f"buffer_store_dwordx4 {vr(vE+8,4)}, v{vE+7}, {srd(S_WS)}, 0 offen sc1", track=False)
a(f"s_mov_b64 exec, s[{sEX}:{sEX+1}]")
a.label("L_noreset")

def stageB_addr(stride, nat):
    t = vE + 6
    a(f"""
    v_lshlrev_b32 v{t}, 2, v{G}
    v_add_u32 v{t}, v{t}, v{RV}                 ; 4*hi+rv
    s_mov_b32 s{sT0}, {4*stride}
    v_mul_lo_u32 v{t}, v{t}, s{sT0}
    v_lshl_add_u32 v{vGO}, v{CB}, 4, v{t}
    v_and_b32 v{t}, 1, v{G}
    v_lshrrev_b32 v{t+1}, 1, v{RV}
    v_lshl_add_u32 v{t}, v{t}, 1, v{t+1}        ; gs
    v_lshrrev_b32 v{t+2}, 1, v{G}
    v_lshlrev_b32 v{t+2}, 10, v{t+2}            ; (hi>>1)*1024
    v_lshl_add_u32 v{t+2}, v{t}, 8, v{t+2}      ; + gs*256
    v_and_b32 v{t+3}, 1, v{RV}
    v_lshl_add_u32 v{t+2}, v{t+3}, 3, v{t+2}    ; + half*8
    s_lshl_b32 s{sT0}, s{sW}, 11
    v_add_u32 v{t+2}, s{sT0}, v{t+2}            ; + 2w*1024
    v_lshrrev_b32 v{t+3}, 1, v{CB}              ; cb>>1
    v_and_b32 v{t+4}, 1, v{CB}                  ; cb&1
    """)
    if nat:
        a(f"""
        v_lshl_add_u32 v{t+2}, v{t+3}, 14, v{t+2}
        v_lshl_add_u32 v{t+2}, v{t+4}, 7, v{t+2}
        v_lshl_or_b32 v{t+4}, v{t+1}, 1, v{t+4}
        v_lshl_or_b32 v{t+4}, v{t+3}, 2, v{t+4}     ; | (cb>>1)<<2  = x3
        """)
        for u in range(8):
            a(f"v_xor_b32 v{t+5}, {u}, v{t+4}\nv_lshl_add_u32 v{vWA+u}, v{t+5}, 4, v{t+2}")
    else:
        a(f"""
        v_lshl_add_u32 v{t+2}, v{CB}, 6, v{t+2}
        v_lshl_or_b32 v{t+4}, v{t+1}, 1, v{t+3}
        """)
        for q in range(4):
            a(f"v_xor_b32 v{t+5}, {q}, v{t+4}\nv_lshl_add_u32 v{vWA+q}, v{t+5}, 4, v{t+2}")

def stageA_gaddr(pmap):
    t = vE + 6
    a(f"""
    v_lshrrev_b32 v{t}, 1, v{G}                 ; k16lo
    v_and_b32 v{t+1}, 1, v{G}                   ; cg
    """)
    if pmap:
        a(f"""
        v_lshrrev_b32 v{t+2}, 1, v{RV}
        v_lshl_add_u32 v{t+2}, v{t}, 1, v{t+2}      ; gs
        v_and_b32 v{t+3}, 1, v{RV}
        v_lshlrev_b32 v{t+2}, 2, v{t+2}
        v_lshl_add_u32 v{t+2}, v{t+3}, 4, v{t+2}
        """)
    else:
        a(f"""
        v_lshlrev_b32 v{t+2}, 2, v{RV}
        v_lshl_add_u32 v{t+2}, v{t}, 4, v{t+2}
        """)
    a(f"""
    v_lshlrev_b32 v{t+2}, 10, v{t+2}
    v_lshl_add_u32 v{t+2}, v{t+1}, 6, v{t+2}
    v_lshl_add_u32 v{vGO}, v{CB}, 4, v{t+2}
    """)

def stageA_waddr(slot_sgpr):
    t = vE + 6
    a(f"""
    v_lshrrev_b32 v{t}, 1, v{G}                 ; k16lo
    v_and_b32 v{t+1}, 1, v{G}                   ; cg
    v_lshrrev_b32 v{t+2}, 1, v{RV}              ; gs&1
    v_lshl_add_u32 v{t+3}, v{t}, 1, v{t+2}      ; gs
    v_lshlrev_b32 v{t+3}, 8, v{t+3}
    v_lshl_add_u32 v{t+3}, v{t+1}, 11, v{t+3}
    v_lshl_add_u32 v{t+3}, v{CB}, 6, v{t+3}
    v_and_b32 v{t+4}, 1, v{RV}
    v_lshl_add_u32 v{t+3}, v{t+4}, 3, v{t+3}
    s_lshl_b32 s{sT0}, s{slot_sgpr}, 12
    v_add_u32 v{t+3}, s{sT0}, v{t+3}
    v_lshrrev_b32 v{t+4}, 1, v{CB}
    v_lshl_or_b32 v{t+4}, v{t+2}, 1, v{t+4}     ; x2
    """)
    for q in range(4):
        a(f"v_xor_b32 v{t+5}, {q}, v{t+4}\nv_lshl_add_u32 v{vWA+q}, v{t+5}, 4, v{t+3}")

def raw_loads(srdb, raw, soff_sgpr, stride, tag, track=True):
    for r in range(4):
        a(f"buffer_load_dwordx4 {vr(raw+4*r,4)}, v{vGO}, {srd(srdb)}, s{soff_sgpr} offen", tag=tag, track=track)
        if r < 3: a(f"s_add_u32 s{soff_sgpr}, s{soff_sgpr}, {stride}")

def perm(raw, out):
    for d in range(4):
        for p in range(2):
            a(f"v_perm_b32 v{out+4*d+p}, v{raw+4*(2*p+1)+d}, v{raw+4*(2*p)+d}, s{sSELLO}")
            a(f"v_perm_b32 v{out+4*d+2+p}, v{raw+4*(2*p+1)+d}, v{raw+4*(2*p)+d}, s{sSELHI}")
def lds_put(out, nat, tile_off, track=True):
    for u in range(8):
        if nat: a(f"ds_write_b64 v{vWA+u}, {vr(out+2*u,2)}", tag="stg", track=track)
        else:   a(f"ds_write_b64 v{vWA+(u&3)}, {vr(out+2*u,2)} offset:{(u>>2)*tile_off}", tag="stg", track=track)
def bump_wa(n, inc):
    for q in range(n): a(f"v_add_u32 v{vWA+q}, {inc}, v{vWA+q}")

stageB_addr(3072, True)
for it, cbase in enumerate((512, 1024, 0)):
    a(f"s_mul_i32 s{sT1}, s{sW}, {64*3072}\ns_lshl_b32 s{sT2}, s{sJ}, 6\ns_add_u32 s{sT1}, s{sT1}, s{sT2}\ns_add_u32 s{sT1}, s{sT1}, {cbase*2}")
    raw_loads(S_WQKV, vRAW1 + 16*it, sT1, 3072, f"wqkv{it}")
a(f"""
v_lshlrev_b32 v{vE+6}, 10, v{I}
v_lshl_add_u32 v{vE+6}, v{G}, 4, v{vE+6}
s_lshl_b32 s{sT1}, s{sC}, 3
s_add_u32 s{sT1}, s{sT1}, s{sW}
s_lshl_b32 s{sT1}, s{sT1}, 14
""")
for s in range(16):
    a(f"buffer_load_dwordx4 {vr(vA+4*s,4)}, v{vE+6}, {srd(S_X)}, s{sT1} offen offset:{64*s}", tag=f"x{s}")
stageA_gaddr(True)
for it in range(2):
    a(f"s_lshl_b32 s{sT1}, s{sW}, 15\ns_and_b32 s{sT2}, s{sJ}, 7\ns_lshl_b32 s{sT2}, s{sT2}, 7\ns_add_u32 s{sT1}, s{sT1}, s{sT2}\ns_add_u32 s{sT1}, s{sT1}, {it*8*32*1024}")
    raw_loads(S_WO, vRAW2 + 16*it, sT1, 1024, "wo")
for it in range(3):
    a.wait_vm(f"wqkv{it}")
    perm(vRAW1 + 16*it, vRING)
    lds_put(vRING, True, 0)
    if it < 2: bump_wa(8, 32768)
    if it == 0:
        a(f"""
        s_cmp_lg_u32 s{sW}, 0
        s_cbranch_scc1 L_nodbg
        s_lshl_b32 s{sT1}, s{sC}, 4
        s_add_u32 s{sT1}, s{sT1}, s{sJ}
        v_mov_b32 v{vTMP}, 1
        s_mov_b64 s[{sEX}:{sEX+1}], exec
        s_mov_b64 exec, 1
        """)
        a(f"buffer_store_byte v{vTMP}, v{vZERO}, {srd(S_DBG)}, s{sT1} offen sc1", track=False)
        a(f"s_mov_b64 exec, s[{sEX}:{sEX+1}]")
        a.label("L_nodbg")
    a("s_waitcnt lgkmcnt(0)")
a("s_barrier")
stamp()

def colsum(odd_swz):
    lab = a.newlabel("L_nocs")
    t = vE + 6
    a(f"s_cmp_ge_u32 s{sW}, 6\ns_cbranch_scc1 {lab}")
    if odd_swz:
        a(f"s_and_b32 s{sT0}, s{sW}, 1\ns_lshl_b32 s{sT0}, s{sT0}, 6\nv_xor_b32 v{t}, s{sT0}, v{vRDA}")
    else:
        a(f"v_mov_b32 v{t}, v{vRDA}")
    a(f"s_lshl_b32 s{sT0}, s{sW}, 14\nv_add_u32 v{t}, s{sT0}, v{t}")
    for q in range(4): a(f"v_mov_b32 v{t+2+q}, s{sONES}")
    for s in range(8): a(f"ds_read_b128 {vr(vRING+4*s,4)}, v{t} offset:{s*1024}", tag=f"cs{s}")
    for s in range(16):
        a.wait_lg(f"cs{s}")
        a(f"v_mfma_f32_16x16x32_bf16 {vr(vACC,4)}, {vr(t+2,4)}, {vr(vRING+4*(s%8),4)}, {'0' if s==0 else vr(vACC,4)}")
        if s + 8 < 16: a(f"ds_read_b128 {vr(vRING+4*(s%8),4)}, v{t} offset:{(s+8)*1024}", tag=f"cs{s+8}")
    a(f"""
    v_lshlrev_b32 v{t}, 2, v{I}
    s_lshl_b32 s{sT0}, s{sW}, 6
    s_add_u32 s{sT0}, s{sT0}, {ZCS}
    v_add_u32 v{t}, s{sT0}, v{t}
    ds_write_b32 v{t}, v{vACC}
    s_waitcnt lgkmcnt(0)
    """)
    a.label(lab)
colsum(True)

def mfma_loop(frags, atag, extra=None, depth=6):
    n = len(frags)
    def rd(f):
        ad, off = frags[f][0], frags[f][1]
        a(f"ds_read_b128 {vr(vRING+4*(f%8),4)}, v{ad} offset:{off}", tag=f"bf{f}")
    for f in range(min(depth, n)): rd(f)
    for f in range(n):
        ad, off, acc, areg, tr, first, at = frags[f]
        if at is not None: a.wait_vm(at)
        a.wait_lg(f"bf{f}")
        w = vr(vRING+4*(f%8),4); x = vr(areg,4); c = "0" if first else vr(acc,4)
        if tr: a(f"v_mfma_f32_16x16x32_bf16 {vr(acc,4)}, {w}, {x}, {c}")
        else:  a(f"v_mfma_f32_16x16x32_bf16 {vr(acc,4)}, {x}, {w}, {c}")
        if extra and f in extra:
            for e in extra[f]: a(e)
        if f + depth < n: rd(f + depth)

def stats_ops(s):
    return [[f"v_dot2c_f32_bf16 v{vS1}, s{sONES}, v{vA+4*s+d}", f"v_dot2c_f32_bf16 v{vS2}, v{vA+4*s+d}, v{vA+4*s+d}"] for d in range(4)]
def stats_final():
    t = vE + 6
    for (swap) in ("v_permlane32_swap_b32", "v_permlane16_swap_b32"):
        a(f"""
        v_mov_b32 v{t}, v{vS1}
        v_mov_b32 v{t+1}, v{vS2}
        {swap} v{vS1}, v{t}
        {swap} v{vS2}, v{t+1}
        v_add_f32 v{vS1}, v{vS1}, v{t}
        v_add_f32 v{vS2}, v{vS2}, v{t+1}
        """)
    a(f"""
    v_mul_f32 v{vS1}, 0x3b000000, v{vS1}        ; mean
    v_mul_f32 v{vS2}, 0x3b000000, v{vS2}
    v_fma_f32 v{vS2}, -v{vS1}, v{vS1}, v{vS2}
    v_max_f32 v{vS2}, 0, v{vS2}
    v_add_f32 v{vS2}, 0x3727c5ac, v{vS2}        ; +1e-5
    v_rsq_f32 v{vS2}, v{vS2}
    v_mul_f32 v{vS1}, v{vS1}, v{vS2}
    """)

a(f"v_mov_b32 v{vS1}, 0\nv_mov_b32 v{vS2}, 0")
frags = []; extra = {}
for s in range(16):
    so = stats_ops(s)
    for t in range(4):
        frags.append((vRDX if t & 1 else vRDA, t*16384 + s*1024, vACC+4*t, vA+4*s, False, s == 0, f"x{s}" if t == 0 else None))
        extra[len(frags)-1] = so[t]
mfma_loop(frags, None, extra)
stats_final()
stamp()
a("s_barrier")
def phi(reg, tmp):
    a(f"""
    v_min_f32 v{tmp}, 0, v{reg}
    v_mul_f32 v{tmp}, 0x3fb8aa3b, v{tmp}
    v_exp_f32 v{tmp}, v{tmp}
    v_max_f32 v{reg}, 0, v{reg}
    v_add_f32 v{reg}, 0x358637bd, v{reg}
    v_add_f32 v{reg}, v{reg}, v{tmp}
    """)
t = vE + 6
a(f"v_lshlrev_b32 v{t}, 4, v{G}\nv_lshlrev_b32 v{t+1}, 2, v{I}")
for r in range(4):
    a(f"ds_bpermute_b32 v{vE+8+r}, v{t}, v{vS2} offset:{4*r}", tag="bp")
    a(f"ds_bpermute_b32 v{vE+12+r}, v{t}, v{vS1} offset:{4*r}", tag="bp")
a(f"v_add_u32 v{t+1}, {ZCS}, v{t+1}")
for tl in range(4): a(f"ds_read_b32 v{vE+16+tl}, v{t+1} offset:{64*tl}", tag="bp")
a("s_waitcnt lgkmcnt(0)")
for tl in range(4):
    for r in range(4):
        ac = vACC + 4*tl + r
        a(f"v_mul_f32 v{vE+20}, v{vE+12+r}, v{vE+16+tl}\nv_fma_f32 v{ac}, v{ac}, v{vE+8+r}, -v{vE+20}")
        if tl < 2: phi(ac, vE+21)
    a(f"v_cvt_pk_bf16_f32 v{vRING+2*tl}, v{vACC+4*tl}, v{vACC+4*tl+1}\nv_cvt_pk_bf16_f32 v{vRING+2*tl+1}, v{vACC+4*tl+2}, v{vACC+4*tl+3}")
a(f"v_mov_b32 v{vRING+8}, s{sONES}\nv_mov_b32 v{vRING+9}, s{sONES}")
for h in range(2):
    a(f"v_mfma_f32_16x16x16_bf16 {vr(vACC+8*h,4)}, {vr(vRING+2*h,2)}, {vr(vRING+4+2*h,2)}, 0")
    a(f"v_mfma_f32_16x16x16_bf16 {vr(vACC+8*h+4,4)}, {vr(vRING+2*h,2)}, {vr(vRING+8,2)}, 0")
a(f"s_lshl_b32 s{sT0}, s{sW}, 12\ns_add_u32 s{sT0}, s{sT0}, {YB}\nv_add_u32 v{t}, s{sT0}, v{vL16}")
for q in range(4): a(f"ds_write_b128 v{t}, {vr(vACC+4*q,4)} offset:{1024*q}")
a("s_waitcnt lgkmcnt(0)\ns_barrier")
def flag_store(k, grp, mem):
    a(f"""
    s_lshl_b32 s{sT0}, s{grp}, 4
    s_add_u32 s{sT0}, s{sT0}, s{mem}
    s_add_u32 s{sT0}, s{sT0}, {k*256}
    s_lshl_b32 s{sT0}, s{sT0}, 7
    s_lshl_b32 s{sT1}, s{sW}, 2
    s_add_u32 s{sT0}, s{sT0}, s{sT1}
    v_mov_b32 v{vTMP}, 1
    s_mov_b64 s[{sEX}:{sEX+1}], exec
    s_mov_b64 exec, 1
    """)
    a(f"buffer_store_dword v{vTMP}, v{vZERO}, {srd(S_WS)}, s{sT0} offen sc1", track=False)
    a(f"s_mov_b64 exec, s[{sEX}:{sEX+1}]")
save = list(a.vmq)
a(f"""
s_cmp_ge_u32 s{sW}, 4
s_cbranch_scc1 L_nokvred
s_lshl_b32 s{sT0}, s{sW}, 10
s_add_u32 s{sT0}, s{sT0}, {YB}
v_add_u32 v{t}, s{sT0}, v{vL16}
""")
for w8 in range(8): a(f"ds_read_b128 {vr(vRING+4*w8,4)}, v{t} offset:{4096*w8}")
a("s_waitcnt lgkmcnt(0)")
for w8 in range(1, 8):
    for q in range(4): a(f"v_add_f32 v{vRING+q}, v{vRING+q}, v{vRING+4*w8+q}")
a(f"""
s_lshl_b32 s{sT0}, s{sJ}, 4
s_add_u32 s{sT0}, s{sT0}, s{sC}
s_lshl_b32 s{sT0}, s{sT0}, 12
s_lshl_b32 s{sT1}, s{sW}, 10
s_add_u32 s{sT0}, s{sT0}, s{sT1}
s_add_u32 s{sT0}, s{sT0}, {KVP}
""")
a(f"buffer_store_dwordx4 {vr(vRING,4)}, v{vL16}, {srd(S_WS)}, s{sT0} offen sc1", track=False)
a("s_waitcnt vmcnt(0)")
flag_store(0, sJ, sC)
a.label("L_nokvred")
a.vmq = save
stamp()
frags = []
for s in range(16):
    for tq in range(2):
        frags.append((vRDY if tq else vRDB, tq*16384 + s*1024, vACC+16+4*tq, vA+4*s, True, s == 0, None))
mfma_loop(frags, None)
a(f"v_lshlrev_b32 v{t}, 4, v{G}\nv_add_u32 v{t}, {ZCS}, v{t}")
for tq in range(2): a(f"ds_read_b128 {vr(vE+8+4*tq,4)}, v{t} offset:{64*(4+tq)}")
a("s_waitcnt lgkmcnt(0)")
for tq in range(2):
    for r in range(4):
        ac = vACC + 16 + 4*tq + r
        a(f"v_mul_f32 v{vE+20}, v{vS1}, v{vE+8+4*tq+r}\nv_fma_f32 v{ac}, v{ac}, v{vS2}, -v{vE+20}")
        phi(ac, vE+21)
    a(f"v_cvt_pk_bf16_f32 v{vKEEP+2*tq}, v{vACC+16+4*tq}, v{vACC+16+4*tq+1}\nv_cvt_pk_bf16_f32 v{vKEEP+2*tq+1}, v{vACC+16+4*tq+2}, v{vACC+16+4*tq+3}")
a("s_barrier")
stageA_waddr(sW)
a("s_waitcnt vmcnt(0)")
for it in range(2):
    perm(vRAW2 + 16*it, vRING)
    lds_put(vRING, False, 1024)
    if it < 1: bump_wa(4, 32768)
    a("s_waitcnt lgkmcnt(0)")
stageB_addr(2752, False)
for it in range(3):
    a(f"s_mul_i32 s{sT1}, s{sW}, {64*2752}\ns_add_u32 s{sT2}, s{sP0}, {it}\ns_min_u32 s{sT2}, s{sT2}, 42\ns_lshl_b32 s{sT2}, s{sT2}, 6\ns_add_u32 s{sT1}, s{sT1}, s{sT2}")
    raw_loads(S_W1, vRAW1 + 16*it, sT1, 2752, "w1")
stageA_gaddr(False)
for it in range(2):
    a(f"s_lshl_b32 s{sT1}, s{sW}, 15\ns_and_b32 s{sT2}, s{sJ}, 7\ns_lshl_b32 s{sT2}, s{sT2}, 7\ns_add_u32 s{sT1}, s{sT1}, s{sT2}\ns_add_u32 s{sT1}, s{sT1}, {(3+it)*8*32*1024}")
    raw_loads(S_W2, vRAW2 + 16*it, sT1, 1024, "w2a")
vXR = vA + 32
a(f"""
v_lshlrev_b32 v{t}, 10, v{I}
v_lshl_add_u32 v{t}, v{G}, 4, v{t}
s_lshl_b32 s{sT1}, s{sMT}, 14
s_and_b32 s{sT2}, s{sJ}, 7
s_lshl_b32 s{sT2}, s{sT2}, 7
s_add_u32 s{sT1}, s{sT1}, s{sT2}
s_lshl_b32 s{sT2}, s{sKH}, 6
s_add_u32 s{sT1}, s{sT1}, s{sT2}
""")
a(f"buffer_load_dwordx4 {vr(vXR,4)}, v{t}, {srd(S_X)}, s{sT1} offen", tag="xr")
stamp()

def poll(k, grp, nw, with_dbg=False):
    lab = a.newlabel("L_pskip"); lp = a.newlabel("L_poll")
    t = vE + 6
    save = list(a.vmq)
    a(f"""
    s_cmp_lg_u32 s{sW}, 0
    s_cbranch_scc1 {lab}
    v_lshrrev_b32 v{t}, 2, v{L}
    v_lshlrev_b32 v{t}, 7, v{t}
    v_lshl_add_u32 v{t}, v{CB}, {2 if nw == 4 else 3}, v{t}
    s_add_u32 s{sT0}, s{grp}, {k*16}
    s_lshl_b32 s{sT0}, s{sT0}, 11
    s_mov_b32 s{sPOLL}, 0
    v_lshlrev_b32 v{t+1}, 2, v{L}
    """)
    a.label(lp)
    if nw == 4: a(f"buffer_load_dword v{t+2}, v{t}, {srd(S_WS)}, s{sT0} offen sc1", track=False)
    else: a(f"buffer_load_dwordx2 {vr(t+2,2)}, v{t}, {srd(S_WS)}, s{sT0} offen sc1", track=False)
    if with_dbg: a(f"buffer_load_dword v{t+4}, v{t+1}, {srd(S_DBG)}, 0 offen sc1", track=False)
    a(f"s_add_u32 s{sPOLL}, s{sPOLL}, 1\ns_waitcnt vmcnt(0)")
    if nw == 8: a(f"v_min_u32 v{t+2}, v{t+2}, v{t+3}")
    if with_dbg:
        a(f"v_cmp_eq_u32 vcc, 0x01010101, v{t+4}\nv_cndmask_b32 v{t+2}, 0, v{t+2}, vcc")
    a(f"""
    v_cmp_ne_u32 vcc, 0, v{t+2}
    s_cmp_gt_u32 s{sPOLL}, 200000
    s_cbranch_scc1 {lab}
    s_cmp_eq_u64 vcc, exec
    s_cbranch_scc0 {lp}
    """)
    a.label(lab)
    a.vmq = save
    a("s_barrier")

poll(0, sJ, 4, with_dbg=True)
stamp()
save = list(a.vmq)
a(f"""
s_cmp_ge_u32 s{sW}, 4
s_cbranch_scc1 L_nokv2
s_lshl_b32 s{sT0}, s{sJ}, 16
s_lshl_b32 s{sT1}, s{sW}, 10
s_add_u32 s{sT0}, s{sT0}, s{sT1}
s_add_u32 s{sT0}, s{sT0}, {KVP}
""")
kvregs = [vRING+4*q for q in range(8)] + [vACC+4*q for q in range(6)] + [vE+16, vE+20]
for c in range(16):
    a(f"buffer_load_dwordx4 {vr(kvregs[c],4)}, v{vL16}, {srd(S_WS)}, s{sT0} offen sc1", track=False)
    if c < 15: a(f"s_add_u32 s{sT0}, s{sT0}, 4096")
a("s_waitcnt vmcnt(0)")
for c in range(1, 16):
    for q in range(4): a(f"v_add_f32 v{vRING+q}, v{vRING+q}, v{kvregs[c]+q}")
a(f"""
v_cvt_pk_bf16_f32 v{vRING+4}, v{vRING}, v{vRING+1}
v_cvt_pk_bf16_f32 v{vRING+5}, v{vRING+2}, v{vRING+3}
v_lshlrev_b32 v{t}, 3, v{L}
s_lshl_b32 s{sT0}, s{sW}, 9
s_add_u32 s{sT0}, s{sT0}, {ZKV}
v_add_u32 v{t}, s{sT0}, v{t}
ds_write_b64 v{t}, {vr(vRING+4,2)}
s_waitcnt lgkmcnt(0)
""")
a.label("L_nokv2")
a.vmq = save
a("s_barrier")
a(f"v_lshlrev_b32 v{t}, 3, v{L}\nv_add_u32 v{t}, {ZKV}, v{t}")
for q in range(4): a(f"ds_read_b64 {vr(vRING+2*q,2)}, v{t} offset:{512*q}")
a("s_waitcnt lgkmcnt(0)")
for q in range(4):
    a(f"v_mfma_f32_16x16x16_bf16 {vr(vACC+4*q,4)}, {vr(vRING+2*q,2)}, {vr(vKEEP+2*(q>>1),2)}, 0")
for h in range(2):
    a(f"v_add_f32 v{vE+8+h}, 0x358637bd, v{vACC+8*h+4}\nv_rcp_f32 v{vE+8+h}, v{vE+8+h}")
for h in range(2):
    for r in range(4): a(f"v_mul_f32 v{vACC+8*h+r}, v{vACC+8*h+r}, v{vE+8+h}")
    a(f"v_cvt_pk_bf16_f32 v{vE+12+2*h}, v{vACC+8*h}, v{vACC+8*h+1}\nv_cvt_pk_bf16_f32 v{vE+13+2*h}, v{vACC+8*h+2}, v{vACC+8*h+3}")
a(f"""
s_lshl_b32 s{sT0}, s{sC}, 3
s_add_u32 s{sT0}, s{sT0}, s{sW}
s_lshl_b32 s{sT0}, s{sT0}, 4
s_add_u32 s{sT0}, s{sT0}, s{sJ}
s_lshl_b32 s{sT0}, s{sT0}, 10
s_add_u32 s{sT0}, s{sT0}, {OFR}
""")
a(f"buffer_store_dwordx4 {vr(vE+12,4)}, v{vL16}, {srd(S_WS)}, s{sT0} offen sc1")
a("s_waitcnt vmcnt(0)")
flag_store(1, sC, sJ)
stamp()
a(f"s_add_u32 s{sT2}, s{sW}, 24")
stageA_waddr(sT2)
perm(vRAW2, vRING); lds_put(vRING, False, 1024); bump_wa(4, 32768); a("s_waitcnt lgkmcnt(0)")
a(f"s_cmp_eq_u32 s{sW}, 7\ns_cbranch_scc1 L_now2a")
perm(vRAW2 + 16, vRING); lds_put(vRING, False, 1024); a("s_waitcnt lgkmcnt(0)")
a.label("L_now2a")
poll(1, sC, 8)
stamp()
a(f"""
s_lshl_b32 s{sT0}, s{sMT}, 4
s_lshl_b32 s{sT1}, s{sKH}, 3
s_add_u32 s{sT0}, s{sT0}, s{sT1}
s_lshl_b32 s{sT0}, s{sT0}, 10
s_add_u32 s{sT0}, s{sT0}, {OFR}
s_lshl_b32 s{sT1}, s{sKH}, 15
v_add_u32 v{vTMP}, s{sT1}, v{vRDA}
""")
for q in range(8):
    a(f"buffer_load_dwordx4 {vr(vA+4*q,4)}, v{vL16}, {srd(S_WS)}, s{sT0} offen offset:{(q%4)*1024} sc1", tag=f"o{q}")
    if q == 3: a(f"s_add_u32 s{sT0}, s{sT0}, 4096")
frags = []
for q in range(8):
    for tl in range(4):
        frags.append((vTMP, (q*4+tl)*1024, vACC+4*tl, vA+4*q, True, q == 0, f"o{q}" if tl == 0 else None))
mfma_loop(frags, None)
def exchange(base):
    t = vE + 6
    l0 = a.newlabel("L_ex0"); l1 = a.newlabel("L_ex1")
    a(f"""
    s_lshl_b32 s{sT0}, s{sW}, 11
    s_add_u32 s{sT0}, s{sT0}, {base}
    v_add_u32 v{t}, s{sT0}, v{vL16}
    s_xor_b32 s{sT1}, s{sW}, 4
    s_lshl_b32 s{sT1}, s{sT1}, 11
    s_add_u32 s{sT1}, s{sT1}, {base}
    v_add_u32 v{t+1}, s{sT1}, v{vL16}
    s_nop 4
    s_cmp_eq_u32 s{sKH}, 0
    s_cbranch_scc0 {l0}
    """)
    a(f"ds_write_b128 v{t}, {vr(vACC+8,4)}\nds_write_b128 v{t}, {vr(vACC+12,4)} offset:1024", track=False)
    for q in range(8): a(f"v_mov_b32 v{vACC+16+q}, v{vACC+q}")
    a(f"s_branch {l1}")
    a.label(l0)
    a(f"ds_write_b128 v{t}, {vr(vACC,4)}\nds_write_b128 v{t}, {vr(vACC+4,4)} offset:1024", track=False)
    for q in range(8): a(f"v_mov_b32 v{vACC+16+q}, v{vACC+8+q}")
    a.label(l1)
    a("s_waitcnt lgkmcnt(0)\ns_barrier")
    a(f"ds_read_b128 {vr(vACC,4)}, v{t+1}\nds_read_b128 {vr(vACC+4,4)}, v{t+1} offset:1024\ns_waitcnt lgkmcnt(0)")
    for q in range(8): a(f"v_add_f32 v{vACC+16+q}, v{vACC+16+q}, v{vACC+q}")
exchange(XB + 65536)
def add_resid(src, dst):
    for d in range(4):
        a(f"""
        v_lshlrev_b32 v{vE+8}, 16, v{src+d}
        v_and_b32 v{vE+9}, 0xffff0000, v{src+d}
        v_add_f32 v{vE+8}, v{vE+8}, v{vACC+16+2*d}
        v_add_f32 v{vE+9}, v{vE+9}, v{vACC+17+2*d}
        v_cvt_pk_bf16_f32 v{dst+d}, v{vE+8}, v{vE+9}
        """)
a.wait_vm("xr")
add_resid(vXR, vKEEP)
a(f"""
s_and_b32 s{sT1}, s{sJ}, 7
s_lshl_b32 s{sT1}, s{sT1}, 1
s_add_u32 s{sT1}, s{sT1}, s{sKH}
s_lshl_b32 s{sT0}, s{sMT}, 4
s_add_u32 s{sT0}, s{sT0}, s{sT1}
s_lshl_b32 s{sT0}, s{sT0}, 10
s_add_u32 s{sT0}, s{sT0}, {HFR}
""")
a(f"buffer_store_dwordx4 {vr(vKEEP,4)}, v{vL16}, {srd(S_WS)}, s{sT0} offen sc1")
a("s_waitcnt vmcnt(0)")
flag_store(2, sC, sJ)
stamp()
a("s_barrier")
stageB_addr(2752, False)
for it in range(3):
    perm(vRAW1 + 16*it, vRING)
    lds_put(vRING, False, 16384)
    if it < 2: bump_wa(4, 32768)
    a("s_waitcnt lgkmcnt(0)")
vW2B = 192
stageA_gaddr(False)
for it in range(3):
    a(f"s_lshl_b32 s{sT1}, s{sW}, 15\ns_and_b32 s{sT2}, s{sJ}, 7\ns_lshl_b32 s{sT2}, s{sT2}, 7\ns_add_u32 s{sT1}, s{sT1}, s{sT2}\ns_add_u32 s{sT1}, s{sT1}, {it*8*32*1024}")
    raw_loads(S_W2, vW2B + 16*it, sT1, 1024, "w2b")
a(f"s_add_u32 s{sT1}, s{sW}, 1\ns_and_b32 s{sT1}, s{sT1}, 7\ns_add_u32 s{sT1}, s{sT1}, 39\ns_lshl_b32 s{sT1}, s{sT1}, 15\ns_and_b32 s{sT2}, s{sJ}, 7\ns_lshl_b32 s{sT2}, s{sT2}, 7\ns_add_u32 s{sT1}, s{sT1}, s{sT2}")
raw_loads(S_W2, vOV, sT1, 1024, "w2b")
a(f"v_lshlrev_b32 v{t}, 4, v{G}")
for it in range(3):
    a(f"s_add_u32 s{sT2}, s{sP0}, {it}\ns_min_u32 s{sT2}, s{sT2}, 42\ns_lshl_b32 s{sT2}, s{sT2}, 6")
    a(f"buffer_load_dwordx4 {vr(vB1+4*it,4)}, v{t}, {srd(S_B1)}, s{sT2} offen", tag="b1")
a("s_barrier")
colsum(False)
poll(2, sC, 8)
stamp()
a(f"""
s_lshl_b32 s{sT0}, s{sC}, 3
s_add_u32 s{sT0}, s{sT0}, s{sW}
s_lshl_b32 s{sT0}, s{sT0}, 14
s_add_u32 s{sT0}, s{sT0}, {HFR}
v_mov_b32 v{vS1}, 0
v_mov_b32 v{vS2}, 0
""")
for s in range(16):
    a(f"buffer_load_dwordx4 {vr(vA+4*s,4)}, v{vL16}, {srd(S_WS)}, s{sT0} offen offset:{(s%4)*1024} sc1", tag=f"h{s}")
    if s % 4 == 3 and s < 15: a(f"s_add_u32 s{sT0}, s{sT0}, 4096")
frags = []; extra = {}
for s in range(16):
    so = stats_ops(s)
    for tl in range(6):
        off = tl*16384 + s*1024
        frags.append((vRDA if off < 65536 else vRDB, off % 65536, vACC+4*tl, vA+4*s, True, s == 0, f"h{s}" if tl == 0 else None))
        if tl < 4: extra[len(frags)-1] = so[tl]
mfma_loop(frags, None, extra)
stats_final()
a(f"v_lshlrev_b32 v{t}, 4, v{G}\nv_add_u32 v{t}, {ZCS}, v{t}")
a.wait_vm("b1")
a(f"""
s_lshl_b32 s{sT0}, s{sC}, 3
s_add_u32 s{sT0}, s{sT0}, s{sW}
s_mul_i32 s{sT0}, s{sT0}, 43
""")
for p in range(3):
    for aa in range(2):
        a(f"ds_read_b128 {vr(vE+8+4*aa,4)}, v{t} offset:{64*(2*p+aa)}")
    a("s_waitcnt lgkmcnt(0)")
    for aa in range(2):
        for r in range(4):
            ac = vACC + 4*(2*p+aa) + r
            bsrc = vB1 + 4*p + 2*aa + (r >> 1)
            x0, x1, x2 = vE+16, vE+17, vE+18
            a(f"v_lshlrev_b32 v{x0}, 16, v{bsrc}" if r % 2 == 0 else f"v_and_b32 v{x0}, 0xffff0000, v{bsrc}")
            a(f"""
            v_fma_f32 v{x0}, -v{vS1}, v{vE+8+4*aa+r}, v{x0}
            v_fma_f32 v{ac}, v{ac}, v{vS2}, v{x0}
            v_mul_f32 v{x1}, 0x3fb8aa3b, v{ac}
            v_min_f32 v{x1}, 0x42200000, v{x1}
            v_exp_f32 v{x1}, v{x1}
            v_add_f32 v{x2}, 2.0, v{x1}
            v_mul_f32 v{x1}, v{x1}, v{x2}
            v_add_f32 v{x2}, 2.0, v{x1}
            v_rcp_f32 v{x2}, v{x2}
            v_mul_f32 v{ac}, v{ac}, v{x1}
            v_mul_f32 v{ac}, v{ac}, v{x2}
            """)
    for d in range(4):
        b = vACC + 8*p + 2*d
        a(f"v_cvt_pk_bf16_f32 v{vRING+4*p+d}, v{b}, v{b+1}")
    a(f"s_add_u32 s{sT2}, s{sP0}, {p}\ns_min_u32 s{sT2}, s{sT2}, 42\ns_add_u32 s{sT2}, s{sT2}, s{sT0}\ns_lshl_b32 s{sT2}, s{sT2}, 10\ns_add_u32 s{sT2}, s{sT2}, {AFR}")
    a(f"buffer_store_dwordx4 {vr(vRING+4*p,4)}, v{vL16}, {srd(S_WS)}, s{sT2} offen sc1")
a("s_waitcnt vmcnt(0)")
flag_store(3, sC, sJ)
stamp()
a("s_barrier")
stageA_waddr(sW)
for it in range(3):
    perm(vW2B + 16*it, vRING)
    lds_put(vRING, False, 1024)
    if it < 2: bump_wa(4, 32768)
    a("s_waitcnt lgkmcnt(0)")
perm(vOV, vRING)
for q in range(16): a(f"v_mov_b32 v{vOV+q}, v{vRING+q}")
a(f"""
s_add_u32 s{sT1}, s{sW}, 1
s_and_b32 s{sT1}, s{sT1}, 7
s_lshr_b32 s{sT2}, s{sT1}, 1
s_mul_i32 s{sT2}, s{sT2}, 20
s_and_b32 s{sT1}, s{sT1}, 1
s_add_u32 s{sT2}, s{sT2}, s{sT1}
""")
stageA_waddr(sT2)
poll(3, sC, 8)
stamp()
a(f"""
s_mul_i32 s{sT0}, s{sMT}, 43
s_lshl_b32 s{sT0}, s{sT0}, 10
s_add_u32 s{sT0}, s{sT0}, {AFR}
s_cmp_eq_u32 s{sKH}, 0
s_cbranch_scc0 L_p4k1
""")
def p4(kh):
    ks = list(range(20)) + [39, 40] if kh == 0 else list(range(20, 39)) + [41, 42]
    slot = {39: 0, 40: 1, 41: 20, 42: 21}
    n = len(ks)
    cur = 0
    for q, k in enumerate(ks):
        while k*1024 - cur >= 4096:
            step = ((k*1024 - cur) // 4096) * 4096
            a(f"s_add_u32 s{sT0}, s{sT0}, {step}"); cur += step
        a(f"buffer_load_dwordx4 {vr(vA+4*q,4)}, v{vL16}, {srd(S_WS)}, s{sT0} offen offset:{k*1024-cur} sc1", tag=f"a{q}")
    def mk(qs, first):
        fr = []
        for q in qs:
            sl = slot.get(ks[q], ks[q])
            for tl in range(4):
                off = sl*4096 + tl*1024
                fr.append(((vRDA, vRDB, vRDC)[off >> 16], off & 0xffff, vACC+4*tl, vA+4*q, True, first and q == 0, f"a{q}" if tl == 0 else None))
        return fr
    mfma_loop(mk(range(0, 2), True), None)
    a("s_waitcnt lgkmcnt(0)\ns_barrier")
    lab = a.newlabel("L_noov")
    a(f"s_add_u32 s{sT1}, s{sW}, 1\ns_and_b32 s{sT1}, s{sT1}, 7\ns_cmp_ge_u32 s{sT1}, 4\ns_cbranch_scc1 {lab}")
    lds_put(vOV, False, 1024, track=False)
    a.label(lab)
    mfma_loop(mk(range(2, n-2), False), None)
    a("s_waitcnt lgkmcnt(0)\ns_barrier")
    mfma_loop(mk(range(n-2, n), False), None)
vmq_save = list(a.vmq)
p4(0)
a("s_branch L_p4done")
a.label("L_p4k1")
a.vmq = list(vmq_save)
p4(1)
a.label("L_p4done")
a("s_nop 7")
exchange(XB + 8192)
add_resid(vKEEP, vE+12)
a(f"""
v_lshlrev_b32 v{t}, 10, v{I}
v_lshl_add_u32 v{t}, v{G}, 4, v{t}
s_lshl_b32 s{sT1}, s{sMT}, 14
s_and_b32 s{sT2}, s{sJ}, 7
s_lshl_b32 s{sT2}, s{sT2}, 7
s_add_u32 s{sT1}, s{sT1}, s{sT2}
s_lshl_b32 s{sT2}, s{sKH}, 6
s_add_u32 s{sT1}, s{sT1}, s{sT2}
""")
a(f"buffer_store_dwordx4 {vr(vE+12,4)}, v{t}, {srd(S_OUT)}, s{sT1} offen")
if STAMPS:
    a("s_waitcnt vmcnt(0)")
    stamp()
    a(f"""
    s_cmp_lg_u32 s{sW}, 0
    s_cbranch_scc1 L_end
    s_lshl_b32 s{sT0}, s2, 8
    s_add_u32 s{sT0}, s{sT0}, {STAMP}
    s_mov_b64 exec, 1
    """)
    for n in range(nstamp[0]):
        a(f"v_mov_b32 v{vE+8}, s{64+2*n}\nbuffer_store_dword v{vE+8}, v{vZERO}, {srd(S_WS)}, s{sT0} offen offset:{4*n}\ns_nop 1")
a.label("L_end")
a("s_endpgm")
a.raw(f""".section .rodata,"a"
.p2align 6
.amdhsa_kernel {KNAME}
  .amdhsa_next_free_vgpr 256
  .amdhsa_next_free_sgpr 102
  .amdhsa_accum_offset 256
  .amdhsa_group_segment_fixed_size 0
  .amdhsa_kernarg_size 80
  .amdhsa_user_sgpr_count 2
  .amdhsa_user_sgpr_kernarg_segment_ptr 1
  .amdhsa_system_sgpr_workgroup_id_x 1
.end_amdhsa_kernel""")
open(OUTF, "w").write(a.text())
print("stamps:", nstamp[0])
```

```python
import re

TRANS = ("v_exp_f32", "v_log_f32", "v_rcp_f32", "v_rsq_f32", "v_sqrt_f32", "v_sin_f32", "v_cos_f32")

def _regs(tok, kind):
    tok = tok.strip()
    tok = tok.lstrip("-")
    if tok.startswith("abs(") or tok.startswith("|"):
        tok = tok.replace("abs(", "").replace(")", "").replace("|", "")
    m = re.fullmatch(kind + r"(\d+)", tok)
    if m: return {int(m.group(1))}
    m = re.fullmatch(kind + r"\[(\d+):(\d+)\]", tok)
    if m: return set(range(int(m.group(1)), int(m.group(2)) + 1))
    if kind == "s" and tok == "vcc": return {106, 107}
    return set()

class Ins:
    __slots__ = ("text", "op", "ops", "vw", "vr", "sw", "sr", "kind", "mf_c", "mf_ab", "states")
    def __init__(self, text):
        self.text = text
        body = text.split(";")[0].strip()
        parts = body.split(None, 1)
        self.op = parts[0]
        rest = parts[1] if len(parts) > 1 else ""
        ops = []; cur = ""; depth = 0
        for ch in rest:
            if ch == "[": depth += 1
            if ch == "]": depth -= 1
            if ch == "," and depth == 0: ops.append(cur.strip()); cur = ""
            else: cur += ch
        if cur.strip(): ops.append(cur.strip())
        if ops:
            last = ops[-1].split()
            ops[-1] = last[0]
            self_mods = last[1:]
        else: self_mods = []
        self.ops = ops
        op = self.op
        self.vw = set(); self.vr = set(); self.sw = set(); self.sr = set()
        self.mf_c = set(); self.mf_ab = set()
        self.states = 1
        if op == "s_nop": self.kind = "nop"; self.states = int(ops[0], 0) + 1
        elif op.startswith("v_mfma"):
            self.kind = "mfma"
            self.vw = _regs(ops[0], "v"); self.mf_ab = _regs(ops[1], "v") | _regs(ops[2], "v"); self.mf_c = _regs(ops[3], "v")
            self.vr = self.mf_ab | self.mf_c
        elif op.startswith("buffer_load") or op.startswith("global_load"):
            self.kind = "vmem_ld"
            if "lds" in self_mods:
                self.vr = _regs(ops[0], "v")
                for o in ops[1:]: self.sr |= _regs(o, "s")
            else:
                self.vw = _regs(ops[0], "v"); self.vr = _regs(ops[1], "v")
                for o in ops[2:]: self.sr |= _regs(o, "s")
        elif op.startswith("buffer_store") or op.startswith("buffer_atomic"):
            self.kind = "vmem_st"; self.vr = _regs(ops[0], "v") | _regs(ops[1], "v")
            for o in ops[2:]: self.sr |= _regs(o, "s")
        elif op.startswith("ds_read") or op.startswith("ds_bpermute") or op.startswith("ds_swizzle"):
            self.kind = "ds_ld"; self.vw = _regs(ops[0], "v")
            for o in ops[1:]: self.vr |= _regs(o, "v")
        elif op.startswith("ds_write") or op.startswith("ds_add"):
            self.kind = "ds_st"
            for o in ops: self.vr |= _regs(o, "v")
        elif op.startswith("v_"):
            self.kind = "valu"
            if op.startswith("v_cmp"):
                self.sw = _regs(ops[0], "s")
                for o in ops[1:]: self.vr |= _regs(o, "v"); self.sr |= _regs(o, "s")
            elif op.startswith("v_readfirstlane") or op.startswith("v_readlane"):
                self.sw = _regs(ops[0], "s"); self.vr = _regs(ops[1], "v")
            elif op.startswith("v_permlane"):
                self.vw = _regs(ops[0], "v") | _regs(ops[1], "v"); self.vr = set(self.vw)
            else:
                self.vw = _regs(ops[0], "v")
                for o in ops[1:]: self.vr |= _regs(o, "v"); self.sr |= _regs(o, "s")
                if op.startswith("v_fmac") or op.startswith("v_dot2c"): self.vr |= self.vw
                if op.startswith("v_cndmask") and len(ops) == 3: self.sr |= {106, 107}
        elif op.startswith("s_"):
            self.kind = "salu"
        else:
            self.kind = "other"

class Asm:
    def __init__(self):
        self.items = []
        self.nlab = 0
        self.vmq = []
        self.lgq = []
    def __call__(self, s, tag=None, track=True):
        for ln in s.strip("\n").split("\n"):
            ln = ln.strip()
            if not ln or ln.startswith(";"): continue
            if ln.endswith(":") and " " not in ln: self.label(ln[:-1]); continue
            ins = Ins(ln)
            self.items.append(ins)
            if ins.kind in ("vmem_ld", "vmem_st"):
                if track: self.vmq.append(tag)
            elif ins.kind in ("ds_ld", "ds_st"):
                if track: self.lgq.append(tag)
            elif ins.op == "s_waitcnt":
                m = re.search(r"vmcnt\((\d+)\)", ln)
                if m:
                    n = int(m.group(1)); self.vmq = self.vmq[len(self.vmq) - n:] if n < len(self.vmq) else self.vmq
                    if n == 0: self.vmq = []
                m = re.search(r"lgkmcnt\((\d+)\)", ln)
                if m:
                    n = int(m.group(1)); self.lgq = self.lgq[len(self.lgq) - n:] if n < len(self.lgq) else self.lgq
                    if n == 0: self.lgq = []
    def raw(self, s): self.items.append(s)
    def label(self, name): self.items.append(name + ":")
    def newlabel(self, p="L"):
        self.nlab += 1
        return f"{p}_{self.nlab}"
    def wait_vm(self, tag):
        idx = [k for k, t in enumerate(self.vmq) if t == tag]
        if not idx: return
        n = len(self.vmq) - 1 - idx[-1]
        assert n <= 63
        self(f"s_waitcnt vmcnt({n})")
    def wait_lg(self, tag):
        idx = [k for k, t in enumerate(self.lgq) if t == tag]
        if not idx: return
        n = len(self.lgq) - 1 - idx[-1]
        if n > 15: n = 15
        self(f"s_waitcnt lgkmcnt({n})")
    def finalize(self):
        out = []
        hist = []
        pos = 0
        def need(ins):
            req = 0
            for (p, ppos) in reversed(hist):
                dist = pos - ppos - p.states
                if dist >= 20: break
                n = 0
                if p.kind == "valu":
                    if ins.kind == "mfma" and (p.vw & ins.vr): n = max(n, 2)
                    if p.op.replace("_e32", "").replace("_e64", "") in TRANS and ins.kind == "valu" and (p.vw & (ins.vr | ins.vw)): n = max(n, 1)
                    if p.sw:
                        if ins.kind == "valu" and (p.sw & ins.sr): n = max(n, 2)
                        if ins.kind in ("vmem_ld", "vmem_st") and (p.sw & ins.sr): n = max(n, 5)
                    if (ins.op.startswith("v_readfirstlane") or ins.op.startswith("v_readlane")) and (p.vw & ins.vr): n = max(n, 1)
                    if ins.op.startswith("v_permlane") and (p.vw & ins.vr): n = max(n, 2)
                    if "dpp" in ins.op and (p.vw & ins.vr): n = max(n, 2)
                    if p.op.startswith("v_dot") and (p.vw & (ins.vr | ins.vw)) and ins.op != p.op: n = max(n, 3)
                if p.kind == "mfma":
                    if ins.kind == "mfma":
                        if p.vw & ins.mf_ab: n = max(n, 8)
                        if p.vw & ins.mf_c:
                            if not (p.vw == ins.mf_c and p.op == ins.op): n = max(n, 6)
                        elif p.vw & ins.vw: n = max(n, 8)
                    elif ins.kind in ("valu", "vmem_ld", "vmem_st", "ds_ld", "ds_st"):
                        if p.vw & (ins.vr | ins.vw): n = max(n, 8)
                        if ins.kind == "valu" and (p.mf_c & ins.vw): n = max(n, 3)
                if p.kind == "vmem_st" and ("x4" in p.op or "x3" in p.op):
                    data = _regs(p.ops[0], "v")
                    if data & ins.vw: n = max(n, 2 if ins.kind == "valu" else 1)
                req = max(req, n - dist)
            return req
        for it in self.items:
            if isinstance(it, str):
                out.append(it); continue
            r = need(it)
            while r > 0:
                k = min(r, 16)
                nop = Ins(f"s_nop {k-1}")
                out.append(nop); hist.append((nop, pos)); pos += nop.states; r -= k
            out.append(it); hist.append((it, pos)); pos += it.states
            if len(hist) > 40: hist = hist[-40:]
        return out
    def text(self):
        lines = []
        for it in self.finalize():
            lines.append(it if isinstance(it, str) else "    " + it.text)
        return "\n".join(lines) + "\n"
```

```python
import sys
from asmgen import Asm
KNAME = "sequential_preLN__linear_attn_block__dense_activation_mish__prompt_kernel"
STAMPS = "--stamps" in sys.argv
OUTF = [a for a in sys.argv[1:] if not a.startswith("--")][0]

FLAGS = 0; KVP = 0x40000; OFR = 0x200000; HFR = 0x400000; AFR = 0x600000; HST = 0xC00000; STAMP = 0x1000000
XB = 0; YB = 98304; ZB = 159744; ZCS = ZB; ZKV = ZB + 1024
S_X, S_WQKV, S_WO, S_W1, S_B1, S_W2, S_OUT, S_DBG, S_WS = 8, 12, 16, 20, 24, 28, 32, 36, 40
sC, sJ, sW = 44, 45, 46
sT0, sT1, sT2, sPF, sPF2, sCOL = 47, 48, 49, 50, 51, 52
sMT, sKH, sMW = 53, 54, 55
sP0 = 56; sPOLL = 57; sEX = 58
sSELLO, sSELHI, sONES = 60, 61, 62
def srd(b): return f"s[{b}:{b+3}]"
vL16, vRDA, vRDB, vRDC, vRDX, vRDY, vZERO = 1, 2, 3, 4, 5, 6, 7
vWA = 8; vGO = 16; vS1, vS2, vTMP = 17, 18, 19
vKEEP = 20; vRING = 24; vACC = 56; vE = 80; vA = 104
vRAW1 = 208; vRAW2 = 176; vOV = 240; vB1 = 168; vW2B = 192
vGO2 = 0
def vr(b, n): return f"v[{b}:{b+n-1}]"

a = Asm()
nstamp = [0]; stamp_names = []
def stamp(name=""):
    if not STAMPS: return
    n = nstamp[0]; nstamp[0] += 1; stamp_names.append(name)
    assert n < 18
    a(f"s_waitcnt lgkmcnt(0)\ns_memrealtime s[{64+2*n}:{65+2*n}]\ns_waitcnt lgkmcnt(0)")

hdr = open("sequential_preLN__linear_attn_block__dense_activation_mish__prompt.s.ref").read().split("; @launch")[0]
a.raw(hdr + "; @launch grid=(256,1,1) block=(512,1,1) lds=163840")
a.raw(f'.amdgcn_target "amdgcn-amd-amdhsa--gfx950"\n.text\n.globl {KNAME}\n.p2align 8\n.type {KNAME},@function')
a.label(KNAME)
L, I, G, CB, RV = vE, vE+1, vE+2, vE+3, vE+4
a(f"""
s_cmp_ge_u32 s2, 256
s_cbranch_scc1 L_end
s_memrealtime s[100:101]
s_load_dwordx4 s[64:67], s[0:1], 0
s_load_dwordx2 s[68:69], s[0:1], 16
s_load_dwordx4 s[72:75], s[0:1], 32
s_load_dwordx4 s[76:79], s[0:1], 48
s_load_dwordx4 s[80:83], s[0:1], 64
s_and_b32 s3, s2, 7
s_lshl_b32 s3, s3, 1
s_lshr_b32 s4, s2, 7
s_add_u32 s{sC}, s3, s4
s_lshr_b32 s{sJ}, s2, 3
s_and_b32 s{sJ}, s{sJ}, 15
v_lshrrev_b32 v{vTMP}, 6, v0
v_and_b32 v{L}, 63, v0
v_readfirstlane_b32 s{sW}, v{vTMP}
s_mov_b32 s{sSELLO}, 0x05040100
s_mov_b32 s{sSELHI}, 0x07060302
s_mov_b32 s{sONES}, 0x3f803f80
v_mov_b32 v{vZERO}, 0
v_lshlrev_b32 v{vL16}, 4, v{L}
v_and_b32 v{I}, 15, v{L}
v_lshrrev_b32 v{G}, 4, v{L}
v_and_b32 v{CB}, 3, v{L}
v_bfe_u32 v{RV}, v{L}, 2, 2
v_lshrrev_b32 v{vE+5}, 3, v{I}
v_and_b32 v{vE+6}, 1, v{G}
v_lshl_or_b32 v{vE+5}, v{vE+6}, 1, v{vE+5}
v_xor_b32 v{vE+5}, v{vE+5}, v{I}
v_lshl_add_u32 v{vE+5}, v{G}, 4, v{vE+5}
v_lshlrev_b32 v{vRDA}, 4, v{vE+5}
v_add_u32 v{vRDB}, 0x10000, v{vRDA}
v_add_u32 v{vRDC}, 0x20000, v{vRDA}
v_xor_b32 v{vRDX}, 64, v{vRDA}
v_add_u32 v{vRDY}, 0x10000, v{vRDX}
s_and_b32 s{sMW}, s{sW}, 3
s_lshr_b32 s{sKH}, s{sW}, 2
s_lshl_b32 s{sMT}, s{sC}, 3
s_lshr_b32 s{sT0}, s{sJ}, 3
s_lshl_b32 s{sT0}, s{sT0}, 2
s_add_u32 s{sMT}, s{sMT}, s{sT0}
s_add_u32 s{sMT}, s{sMT}, s{sMW}
s_mul_i32 s{sP0}, s{sJ}, 3
s_lshl_b32 s{sT0}, s{sJ}, 1
s_add_u32 s{sT0}, s{sT0}, 11
s_cmp_lt_u32 s{sJ}, 11
s_cselect_b32 s{sP0}, s{sP0}, s{sT0}
s_and_b32 s{sCOL}, s{sJ}, 7
s_lshl_b32 s{sCOL}, s{sCOL}, 7
""")
def mk_srd(b, lo, nbytes):
    a(f"s_mov_b32 s{b}, s{lo}\ns_and_b32 s{b+1}, s{lo+1}, 0xffff\ns_mov_b32 s{b+2}, {nbytes}\ns_mov_b32 s{b+3}, 0x00020000")

def stageB_gaddr(stride, go):
    t = vE + 6
    a(f"""
    v_lshlrev_b32 v{t}, 2, v{G}
    v_add_u32 v{t}, v{t}, v{RV}
    s_mov_b32 s{sT0}, {4*stride}
    v_mul_lo_u32 v{t}, v{t}, s{sT0}
    v_lshl_add_u32 v{go}, v{CB}, 4, v{t}
    """)
def stageB_waddr(nat, base=0):
    t = vE + 6
    a(f"""
    v_and_b32 v{t}, 1, v{G}
    v_lshrrev_b32 v{t+1}, 1, v{RV}
    v_lshl_add_u32 v{t}, v{t}, 1, v{t+1}
    v_lshrrev_b32 v{t+2}, 1, v{G}
    v_lshlrev_b32 v{t+2}, 10, v{t+2}
    v_lshl_add_u32 v{t+2}, v{t}, 8, v{t+2}
    v_and_b32 v{t+3}, 1, v{RV}
    v_lshl_add_u32 v{t+2}, v{t+3}, 3, v{t+2}
    s_lshl_b32 s{sT0}, s{sW}, 11
    s_add_u32 s{sT0}, s{sT0}, {base}
    v_add_u32 v{t+2}, s{sT0}, v{t+2}
    v_lshrrev_b32 v{t+3}, 1, v{CB}
    v_and_b32 v{t+4}, 1, v{CB}
    """)
    if nat:
        a(f"""
        v_lshl_add_u32 v{t+2}, v{t+3}, 14, v{t+2}
        v_lshl_add_u32 v{t+2}, v{t+4}, 7, v{t+2}
        v_lshl_or_b32 v{t+4}, v{t+1}, 1, v{t+4}
        v_lshl_or_b32 v{t+4}, v{t+3}, 2, v{t+4}
        """)
        for u in range(8):
            a(f"v_xor_b32 v{t+5}, {u}, v{t+4}\nv_lshl_add_u32 v{vWA+u}, v{t+5}, 4, v{t+2}")
    else:
        a(f"""
        v_lshl_add_u32 v{t+2}, v{CB}, 6, v{t+2}
        v_lshl_or_b32 v{t+4}, v{t+1}, 1, v{t+3}
        """)
        for q in range(4):
            a(f"v_xor_b32 v{t+5}, {q}, v{t+4}\nv_lshl_add_u32 v{vWA+q}, v{t+5}, 4, v{t+2}")
def stageA_gaddr(pmap, go):
    t = vE + 6
    a(f"v_lshrrev_b32 v{t}, 1, v{G}\nv_and_b32 v{t+1}, 1, v{G}")
    if pmap:
        a(f"""
        v_lshrrev_b32 v{t+2}, 1, v{RV}
        v_lshl_add_u32 v{t+2}, v{t}, 1, v{t+2}
        v_and_b32 v{t+3}, 1, v{RV}
        v_lshlrev_b32 v{t+2}, 2, v{t+2}
        v_lshl_add_u32 v{t+2}, v{t+3}, 4, v{t+2}
        """)
    else:
        a(f"v_lshlrev_b32 v{t+2}, 2, v{RV}\nv_lshl_add_u32 v{t+2}, v{t}, 4, v{t+2}")
    a(f"""
    v_lshlrev_b32 v{t+2}, 10, v{t+2}
    v_lshl_add_u32 v{t+2}, v{t+1}, 6, v{t+2}
    v_lshl_add_u32 v{go}, v{CB}, 4, v{t+2}
    """)
def stageA_waddr(slot_sgpr):
    t = vE + 6
    a(f"""
    v_lshrrev_b32 v{t}, 1, v{G}
    v_and_b32 v{t+1}, 1, v{G}
    v_lshrrev_b32 v{t+2}, 1, v{RV}
    v_lshl_add_u32 v{t+3}, v{t}, 1, v{t+2}
    v_lshlrev_b32 v{t+3}, 8, v{t+3}
    v_lshl_add_u32 v{t+3}, v{t+1}, 11, v{t+3}
    v_lshl_add_u32 v{t+3}, v{CB}, 6, v{t+3}
    v_and_b32 v{t+4}, 1, v{RV}
    v_lshl_add_u32 v{t+3}, v{t+4}, 3, v{t+3}
    s_lshl_b32 s{sT0}, s{slot_sgpr}, 12
    v_add_u32 v{t+3}, s{sT0}, v{t+3}
    v_lshrrev_b32 v{t+4}, 1, v{CB}
    v_lshl_or_b32 v{t+4}, v{t+2}, 1, v{t+4}
    """)
    for q in range(4):
        a(f"v_xor_b32 v{t+5}, {q}, v{t+4}\nv_lshl_add_u32 v{vWA+q}, v{t+5}, 4, v{t+3}")
def raw_stream(srdb, raw, pre, stride, tag, go):
    out = []
    for r in range(4):
        txt = (pre + "\n" if r == 0 else f"s_add_u32 s{sPF}, s{sPF}, {stride}\n")
        out.append((txt + f"buffer_load_dwordx4 {vr(raw+4*r,4)}, v{go}, {srd(srdb)}, s{sPF} offen", tag))
    return out
def emit_stream(st):
    for txt, tg in st: a(txt, tag=tg)
def perm(raw, out):
    for d in range(4):
        for p in range(2):
            a(f"v_perm_b32 v{out+4*d+p}, v{raw+4*(2*p+1)+d}, v{raw+4*(2*p)+d}, s{sSELLO}")
            a(f"v_perm_b32 v{out+4*d+2+p}, v{raw+4*(2*p+1)+d}, v{raw+4*(2*p)+d}, s{sSELHI}")
def lds_put(out, nat, tile_off, track=True):
    for u in range(8):
        if nat: a(f"ds_write_b64 v{vWA+u}, {vr(out+2*u,2)}", tag="stg", track=track)
        else:   a(f"ds_write_b64 v{vWA+(u&3)}, {vr(out+2*u,2)} offset:{(u>>2)*tile_off}", tag="stg", track=track)
def bump_wa(n, inc):
    for q in range(n): a(f"v_add_u32 v{vWA+q}, {inc}, v{vWA+q}")
def stage_iters(raw, n, nat, tile_off, inc=32768):
    for it in range(n):
        o = vRING + 16*(it & 1)
        if it >= 2: a("s_waitcnt lgkmcnt(8)")
        perm(raw + 16*it, o)
        lds_put(o, nat, tile_off)
        if it < n-1: bump_wa(8 if nat else 4, inc)
    a("s_waitcnt lgkmcnt(0)")
def pre_wqkv(cbase): return f"s_mul_i32 s{sPF}, s{sW}, {64*3072}\ns_lshl_b32 s{sPF2}, s{sJ}, 6\ns_add_u32 s{sPF}, s{sPF}, s{sPF2}\ns_add_u32 s{sPF}, s{sPF}, {cbase*2}"
def pre_A(it): return f"s_lshl_b32 s{sPF}, s{sW}, 15\ns_add_u32 s{sPF}, s{sPF}, s{sCOL}\ns_add_u32 s{sPF}, s{sPF}, {it*8*32*1024}"
def pre_w1(it): return f"s_mul_i32 s{sPF}, s{sW}, {64*2752}\ns_add_u32 s{sPF2}, s{sP0}, {it}\ns_min_u32 s{sPF2}, s{sPF2}, 42\ns_lshl_b32 s{sPF2}, s{sPF2}, 6\ns_add_u32 s{sPF}, s{sPF}, s{sPF2}"
pre_ov = f"s_add_u32 s{sPF}, s{sW}, 1\ns_and_b32 s{sPF}, s{sPF}, 7\ns_add_u32 s{sPF}, s{sPF}, 39\ns_lshl_b32 s{sPF}, s{sPF}, 15\ns_add_u32 s{sPF}, s{sPF}, s{sCOL}"

stageB_gaddr(3072, vGO)
stageB_waddr(True)
sXO, sXR = 63, 3
a(f"""
v_sub_u32 v{vE+6}, 0, v{G}
v_and_b32 v{vE+6}, 3, v{vE+6}
v_xor_b32 v{vE+6}, v{vE+6}, v{CB}
v_lshrrev_b32 v{vTMP}, 2, v{L}
v_lshlrev_b32 v{vTMP}, 10, v{vTMP}
v_lshl_add_u32 v{vTMP}, v{vE+6}, 4, v{vTMP}
s_lshl_b32 s{sXO}, s{sC}, 3
s_add_u32 s{sXO}, s{sXO}, s{sW}
s_lshl_b32 s{sXO}, s{sXO}, 14
s_mul_i32 s{sXR}, s{sW}, 11264
s_add_u32 s{sXR}, s{sXR}, 65536
v_lshrrev_b32 v{vE+6}, 2, v{I}
v_sub_u32 v{vE+6}, 0, v{vE+6}
v_and_b32 v{vE+6}, 3, v{vE+6}
v_xor_b32 v{vE+6}, v{vE+6}, v{G}
v_lshlrev_b32 v{vE+6}, 4, v{vE+6}
v_lshl_add_u32 v{vE+6}, v{I}, 6, v{vE+6}
v_add_u32 v{vE+5}, s{sXR}, v{vE+6}
s_waitcnt lgkmcnt(0)
""")
def xdma(s_):
    slot = s_ % 11
    a(f"s_add_u32 m0, s{sXR}, {slot*1024}\ns_add_u32 s{sPF2}, s{sXO}, {64*s_}")
    a(f"buffer_load_dwordx4 v{vTMP}, {srd(S_X)}, s{sPF2} offen lds", tag=f"xd{s_}")
mk_srd(S_WQKV, 66, 512*1536*2)
mk_srd(S_X, 64, 2048*512*2)
for it, cbase in enumerate((512, 1024)):
    emit_stream(raw_stream(S_WQKV, vRAW1 + 16*it, pre_wqkv(cbase), 3072, f"wqkv{it}", vGO))
a("s_barrier")
for s in range(11): xdma(s)
mk_srd(S_WO, 68, 512*512*2)
mk_srd(S_W1, 72, 512*1376*2)
mk_srd(S_B1, 74, 1376*2)
mk_srd(S_W2, 76, 1376*512*2)
mk_srd(S_OUT, 78, 2048*512*2)
mk_srd(S_DBG, 80, 256)
mk_srd(S_WS, 82, 0x10000000)
stamp("issued")
a(f"""
s_cmp_lg_u32 s{sW}, 7
s_cbranch_scc1 L_noreset
s_lshl_b32 s{sT0}, s{sJ}, 4
s_add_u32 s{sT0}, s{sT0}, s{sC}
s_lshl_b32 s{sT1}, s{sC}, 4
s_add_u32 s{sT1}, s{sT1}, s{sJ}
v_lshrrev_b32 v{vE+6}, 1, v{L}
v_lshlrev_b32 v{vE+7}, 8, v{vE+6}
v_add_u32 v{vE+7}, s{sT1}, v{vE+7}
v_mov_b32 v{vE+8}, s{sT0}
v_cmp_eq_u32 vcc, 0, v{vE+6}
v_cndmask_b32 v{vE+7}, v{vE+7}, v{vE+8}, vcc
v_lshlrev_b32 v{vE+7}, 7, v{vE+7}
v_and_b32 v{vE+8}, 1, v{L}
v_lshl_add_u32 v{vE+7}, v{vE+8}, 4, v{vE+7}
v_mov_b32 v{vE+8}, 0
v_mov_b32 v{vE+9}, 0
v_mov_b32 v{vE+10}, 0
v_mov_b32 v{vE+11}, 0
s_mov_b64 s[{sEX}:{sEX+1}], exec
s_mov_b64 exec, 0xff
""")
a(f"buffer_store_dwordx4 {vr(vE+8,4)}, v{vE+7}, {srd(S_WS)}, 0 offen sc1", track=False)
a(f"s_mov_b64 exec, s[{sEX}:{sEX+1}]")
a.label("L_noreset")
stageA_gaddr(True, vGO2)
for it in range(2):
    a.wait_vm(f"wqkv{it}")
    perm(vRAW1 + 16*it, vRING + 16*it)
    lds_put(vRING + 16*it, True, 0)
    bump_wa(8, 32768)
a("s_waitcnt lgkmcnt(0)\ns_barrier")
stamp("kvstaged")

def colsum(odd_swz, w_lo, w_hi, tile_add=0):
    lab = a.newlabel("L_nocs")
    t = vE + 6
    if w_lo > 0: a(f"s_cmp_lt_u32 s{sW}, {w_lo}\ns_cbranch_scc1 {lab}")
    a(f"s_cmp_ge_u32 s{sW}, {w_hi}\ns_cbranch_scc1 {lab}")
    a(f"s_add_u32 s{sT1}, s{sW}, {tile_add & 0xffffffff}")
    if odd_swz:
        a(f"s_and_b32 s{sT0}, s{sT1}, 1\ns_lshl_b32 s{sT0}, s{sT0}, 6\nv_xor_b32 v{t}, s{sT0}, v{vRDA}")
    else:
        a(f"v_mov_b32 v{t}, v{vRDA}")
    a(f"s_lshl_b32 s{sT0}, s{sT1}, 14\nv_add_u32 v{t}, s{sT0}, v{t}")
    for q in range(4): a(f"v_mov_b32 v{t+2+q}, s{sONES}")
    for s in range(8): a(f"ds_read_b128 {vr(vRING+4*s,4)}, v{t} offset:{s*1024}", tag=f"cs{s}")
    acc = t + 6
    for s in range(16):
        a.wait_lg(f"cs{s}")
        a(f"v_mfma_f32_16x16x32_bf16 {vr(acc,4)}, {vr(t+2,4)}, {vr(vRING+4*(s%8),4)}, {'0' if s==0 else vr(acc,4)}")
        if s + 8 < 16: a(f"ds_read_b128 {vr(vRING+4*(s%8),4)}, v{t} offset:{(s+8)*1024}", tag=f"cs{s+8}")
    a(f"""
    v_lshlrev_b32 v{t}, 2, v{I}
    s_lshl_b32 s{sT0}, s{sT1}, 6
    s_add_u32 s{sT0}, s{sT0}, {ZCS}
    v_add_u32 v{t}, s{sT0}, v{t}
    ds_write_b32 v{t}, v{acc}
    s_waitcnt lgkmcnt(0)
    """)
    a.label(lab)
colsum(True, 4, 8, -4)

def mfma_loop(frags, extra=None, depth=6, pf=None, pf_start=0, pf_every=2):
    n = len(frags)
    def rd(f):
        ad, off = frags[f][0], frags[f][1]
        a(f"ds_read_b128 {vr(vRING+4*(f%8),4)}, v{ad} offset:{off}", tag=f"bf{f}")
    for f in range(min(depth, n)): rd(f)
    for f in range(n):
        ad, off, acc, areg, tr, first, at = frags[f]
        if at is not None: a.wait_vm(at)
        a.wait_lg(f"bf{f}")
        w = vr(vRING+4*(f%8),4); x = vr(areg,4); c = "0" if first else vr(acc,4)
        if tr: a(f"v_mfma_f32_16x16x32_bf16 {vr(acc,4)}, {w}, {x}, {c}")
        else:  a(f"v_mfma_f32_16x16x32_bf16 {vr(acc,4)}, {x}, {w}, {c}")
        if extra and f in extra:
            for e in extra[f]: a(e)
        if f + depth < n: rd(f + depth)
        if pf and f >= pf_start and (f - pf_start) % pf_every == 0:
            txt, tg = pf.pop(0); a(txt, tag=tg)
    while pf:
        txt, tg = pf.pop(0); a(txt, tag=tg)
def stats_ops(s):
    return [[f"v_dot2c_f32_bf16 v{vS1}, s{sONES}, v{vA+4*s+d}", f"v_dot2c_f32_bf16 v{vS2}, v{vA+4*s+d}, v{vA+4*s+d}"] for d in range(4)]
def greduce(r1, r2):
    t = vE + 6
    for swap in ("v_permlane32_swap_b32", "v_permlane16_swap_b32"):
        a(f"""
        v_mov_b32 v{t}, v{r1}
        v_mov_b32 v{t+1}, v{r2}
        {swap} v{r1}, v{t}
        {swap} v{r2}, v{t+1}
        v_add_f32 v{r1}, v{r1}, v{t}
        v_add_f32 v{r2}, v{r2}, v{t+1}
        """)
def stats_final():
    greduce(vS1, vS2)
    a(f"""
    v_mul_f32 v{vS1}, 0x3b000000, v{vS1}
    v_mul_f32 v{vS2}, 0x3b000000, v{vS2}
    v_fma_f32 v{vS2}, -v{vS1}, v{vS1}, v{vS2}
    v_max_f32 v{vS2}, 0, v{vS2}
    v_add_f32 v{vS2}, 0x3727c5ac, v{vS2}
    v_rsq_f32 v{vS2}, v{vS2}
    v_mul_f32 v{vS1}, v{vS1}, v{vS2}
    """)

a(f"v_mov_b32 v{vS1}, 0\nv_mov_b32 v{vS2}, 0\nv_mov_b32 v{vE+8}, 0\nv_mov_b32 v{vE+9}, 0")
frags = []; extra = {}
def xread(s_):
    return [("W", f"xd{s_}"), ("I", f"ds_read_b128 {vr(vA+4*s_,4)}, v{vE+5} offset:{(s_%11)*1024}", f"xr{s_}")]
def run_extra(lst):
    for e in lst:
        if e[0] == "W": a.wait_vm(e[1])
        elif e[0] == "I": a(e[1], tag=e[2])
        elif e[0] == "D": xdma(e[1])
        elif e[0] == "S": emit_stream(e[1])
run_extra(xread(0)); run_extra(xread(1))
n = 64
def rdk(f):
    s_, t_ = f // 4, f % 4
    a(f"ds_read_b128 {vr(vRING+4*(f%8),4)}, v{vRDX if t_ & 1 else vRDA} offset:{t_*16384 + s_*1024}", tag=f"bf{f}")
for f in range(6): rdk(f)
qst = raw_stream(S_WQKV, vRAW1 + 32, pre_wqkv(0), 3072, "wqkv2", vGO)
for f in range(n):
    s_, t_ = f // 4, f % 4
    if t_ == 0: a.wait_lg(f"xr{s_}")
    a.wait_lg(f"bf{f}")
    a(f"v_mfma_f32_16x16x32_bf16 {vr(vACC+4*t_,4)}, {vr(vA+4*s_,4)}, {vr(vRING+4*(f%8),4)}, {'0' if s_ == 0 else vr(vACC+4*t_,4)}")
    if t_ == 0 and s_ + 11 < 16: xdma(s_ + 11)
    if t_ == 1 and s_ + 2 < 16: run_extra(xread(s_ + 2))
    if t_ == 2 and 5 <= s_ < 9: emit_stream([qst.pop(0)])
    if f + 6 < n: rdk(f + 6)
stamp("kvloop")
for d in range(0, 64, 2):
    a(f"v_dot2c_f32_bf16 v{vS1}, s{sONES}, v{vA+d}\nv_dot2c_f32_bf16 v{vS2}, v{vA+d}, v{vA+d}")
    a(f"v_dot2c_f32_bf16 v{vE+8}, s{sONES}, v{vA+d+1}\nv_dot2c_f32_bf16 v{vE+9}, v{vA+d+1}, v{vA+d+1}")
a(f"v_add_f32 v{vS1}, v{vS1}, v{vE+8}\nv_add_f32 v{vS2}, v{vS2}, v{vE+9}")
stats_final()
t = vE + 6
a(f"v_lshlrev_b32 v{t}, 4, v{G}\nv_lshlrev_b32 v{t+1}, 2, v{I}\nv_add_u32 v{t+1}, {ZCS}, v{t+1}")
for r in range(4):
    a(f"ds_bpermute_b32 v{vE+8+r}, v{t}, v{vS2} offset:{4*r}", tag="bp")
    a(f"ds_bpermute_b32 v{vE+12+r}, v{t}, v{vS1} offset:{4*r}", tag="bp")
a("s_barrier")
a.wait_vm("wqkv2")
perm(vRAW1 + 32, vRING); lds_put(vRING, True, 0)
a("s_waitcnt lgkmcnt(0)\ns_barrier")
def phi(reg, tmp):
    a(f"""
    v_min_f32 v{tmp}, 0, v{reg}
    v_mul_f32 v{tmp}, 0x3fb8aa3b, v{tmp}
    v_exp_f32 v{tmp}, v{tmp}
    v_max_f32 v{reg}, 0, v{reg}
    v_add_f32 v{reg}, 0x358637bd, v{reg}
    v_add_f32 v{reg}, v{reg}, v{tmp}
    """)
for tl in range(4): a(f"ds_read_b32 v{vE+16+tl}, v{t+1} offset:{64*tl}", tag="bp")
a("s_waitcnt lgkmcnt(0)")
for tl in range(4):
    for r in range(4):
        ac = vACC + 4*tl + r
        a(f"v_mul_f32 v{vE+20+(r&1)}, v{vE+12+r}, v{vE+16+tl}\nv_fma_f32 v{ac}, v{ac}, v{vE+8+r}, -v{vE+20+(r&1)}")
        if tl < 2: phi(ac, vE+22+(r&1))
    a(f"v_cvt_pk_bf16_f32 v{vRING+2*tl}, v{vACC+4*tl}, v{vACC+4*tl+1}\nv_cvt_pk_bf16_f32 v{vRING+2*tl+1}, v{vACC+4*tl+2}, v{vACC+4*tl+3}")
a(f"v_mov_b32 v{vRING+8}, s{sONES}\nv_mov_b32 v{vRING+9}, s{sONES}")
a(f"s_lshl_b32 s{sT0}, s{sW}, 12\ns_add_u32 s{sT0}, s{sT0}, {YB}\nv_add_u32 v{t}, s{sT0}, v{vL16}")
for h in range(2):
    a(f"v_mfma_f32_16x16x16_bf16 {vr(vACC+8*h,4)}, {vr(vRING+2*h,2)}, {vr(vRING+4+2*h,2)}, 0")
    a(f"v_mfma_f32_16x16x16_bf16 {vr(vACC+8*h+4,4)}, {vr(vRING+2*h,2)}, {vr(vRING+8,2)}, 0")
for q in range(4): a(f"ds_write_b128 v{t}, {vr(vACC+4*q,4)} offset:{1024*q}")
a("s_waitcnt lgkmcnt(0)\ns_barrier")
def flag_store(k, grp, mem):
    a(f"""
    s_lshl_b32 s{sT0}, s{grp}, 4
    s_add_u32 s{sT0}, s{sT0}, s{mem}
    s_add_u32 s{sT0}, s{sT0}, {k*256}
    s_lshl_b32 s{sT0}, s{sT0}, 7
    s_lshl_b32 s{sT1}, s{sW}, 2
    s_add_u32 s{sT0}, s{sT0}, s{sT1}
    v_mov_b32 v{vTMP}, 1
    s_mov_b64 s[{sEX}:{sEX+1}], exec
    s_mov_b64 exec, 1
    s_waitcnt vmcnt(0)
    """)
    a(f"buffer_store_dword v{vTMP}, v{vZERO}, {srd(S_WS)}, s{sT0} offen sc1", track=False)
    a(f"s_mov_b64 exec, s[{sEX}:{sEX+1}]")
save = list(a.vmq)
a(f"""
s_cmp_ge_u32 s{sW}, 4
s_cbranch_scc1 L_nokvred
s_lshl_b32 s{sT0}, s{sW}, 10
s_add_u32 s{sT0}, s{sT0}, {YB}
v_add_u32 v{t}, s{sT0}, v{vL16}
""")
for w8 in range(8): a(f"ds_read_b128 {vr(vRING+4*w8,4)}, v{t} offset:{4096*w8}")
a(f"""
s_lshl_b32 s{sT2}, s{sJ}, 4
s_add_u32 s{sT2}, s{sT2}, s{sC}
s_lshl_b32 s{sT2}, s{sT2}, 12
s_lshl_b32 s{sT1}, s{sW}, 10
s_add_u32 s{sT2}, s{sT2}, s{sT1}
s_add_u32 s{sT2}, s{sT2}, {KVP}
s_waitcnt lgkmcnt(0)
""")
for w8 in (1, 3, 5, 7):
    for q in range(4): a(f"v_add_f32 v{vRING+4*(w8-1)+q}, v{vRING+4*(w8-1)+q}, v{vRING+4*w8+q}")
for w8 in (2, 6):
    for q in range(4): a(f"v_add_f32 v{vRING+4*(w8-2)+q}, v{vRING+4*(w8-2)+q}, v{vRING+4*w8+q}")
for q in range(4): a(f"v_add_f32 v{vRING+q}, v{vRING+q}, v{vRING+16+q}")
a(f"buffer_store_dwordx4 {vr(vRING,4)}, v{vL16}, {srd(S_WS)}, s{sT2} offen sc1", track=False)
flag_store(0, sJ, sC)
a.label("L_nokvred")
a.vmq = save
colsum(True, 4, 6, 0)
a(f"""
s_cmp_lg_u32 s{sW}, 7
s_cbranch_scc1 L_nodbg
s_lshl_b32 s{sT1}, s{sC}, 4
s_add_u32 s{sT1}, s{sT1}, s{sJ}
v_mov_b32 v{vTMP}, 1
s_mov_b64 s[{sEX}:{sEX+1}], exec
s_mov_b64 exec, 1
s_waitcnt vmcnt(0)
""")
a(f"buffer_store_byte v{vTMP}, v{vZERO}, {srd(S_DBG)}, s{sT1} offen sc1", track=False)
a(f"s_mov_b64 exec, s[{sEX}:{sEX+1}]")
a.label("L_nodbg")
a.vmq = save
stamp("kvpub")
stageB_gaddr(2752, vGO)
frags = []
for s in range(16):
    for tq in range(2):
        frags.append((vRDY if tq else vRDB, tq*16384 + s*1024, vACC+16+4*tq, vA+4*s, True, s == 0, None))
pf = raw_stream(S_WO, vRAW2, pre_A(0), 1024, "wo", vGO2) + raw_stream(S_WO, vRAW2+16, pre_A(1), 1024, "wo", vGO2)
pf += raw_stream(S_W1, vRAW1, pre_w1(0), 2752, "w1", vGO)
mfma_loop(frags, pf=pf, pf_start=0, pf_every=2)
a("s_barrier")
a(f"v_lshlrev_b32 v{t}, 4, v{G}\nv_add_u32 v{t}, {ZCS}, v{t}")
for tq in range(2): a(f"ds_read_b128 {vr(vE+8+4*tq,4)}, v{t} offset:{64*(4+tq)}")
a("s_waitcnt lgkmcnt(0)")
for tq in range(2):
    for r in range(4):
        ac = vACC + 16 + 4*tq + r
        a(f"v_mul_f32 v{vE+20+(r&1)}, v{vS1}, v{vE+8+4*tq+r}\nv_fma_f32 v{ac}, v{ac}, v{vS2}, -v{vE+20+(r&1)}")
        phi(ac, vE+22+(r&1))
    a(f"v_cvt_pk_bf16_f32 v{vKEEP+2*tq}, v{vACC+16+4*tq}, v{vACC+16+4*tq+1}\nv_cvt_pk_bf16_f32 v{vKEEP+2*tq+1}, v{vACC+16+4*tq+2}, v{vACC+16+4*tq+3}")
stamp("qdone")
stageA_waddr(sW)
a.wait_vm("wo")
stage_iters(vRAW2, 2, False, 1024)
vXR = vA + 32
a(f"""
v_lshlrev_b32 v{t}, 10, v{I}
v_lshl_add_u32 v{t}, v{G}, 4, v{t}
s_lshl_b32 s{sT1}, s{sMT}, 14
s_add_u32 s{sT1}, s{sT1}, s{sCOL}
s_lshl_b32 s{sT2}, s{sKH}, 6
s_add_u32 s{sT1}, s{sT1}, s{sT2}
""")
a(f"buffer_load_dwordx4 {vr(vXR,4)}, v{t}, {srd(S_X)}, s{sT1} offen", tag="xr")
stageA_gaddr(False, vGO2)
stamp("wostaged")

def poll(k, grp, nw, with_dbg=False):
    lab = a.newlabel("L_pskip"); lp = a.newlabel("L_poll")
    t = vE + 6
    save = list(a.vmq)
    a(f"""
    s_cmp_lg_u32 s{sW}, 0
    s_cbranch_scc1 {lab}
    v_lshrrev_b32 v{t}, 2, v{L}
    v_lshlrev_b32 v{t}, 7, v{t}
    v_lshl_add_u32 v{t}, v{CB}, {2 if nw == 4 else 3}, v{t}
    s_add_u32 s{sT0}, s{grp}, {k*16}
    s_lshl_b32 s{sT0}, s{sT0}, 11
    s_mov_b32 s{sPOLL}, 0
    v_lshlrev_b32 v{t+1}, 2, v{L}
    """)
    a.label(lp)
    if nw == 4: a(f"buffer_load_dword v{t+2}, v{t}, {srd(S_WS)}, s{sT0} offen sc1", track=False)
    else: a(f"buffer_load_dwordx2 {vr(t+2,2)}, v{t}, {srd(S_WS)}, s{sT0} offen sc1", track=False)
    if with_dbg: a(f"buffer_load_dword v{t+4}, v{t+1}, {srd(S_DBG)}, 0 offen sc1", track=False)
    a(f"s_add_u32 s{sPOLL}, s{sPOLL}, 1\ns_waitcnt vmcnt(0)")
    if nw == 8: a(f"v_min_u32 v{t+2}, v{t+2}, v{t+3}")
    if with_dbg:
        a(f"v_cmp_eq_u32 vcc, 0x01010101, v{t+4}\nv_cndmask_b32 v{t+2}, 0, v{t+2}, vcc")
    a(f"""
    v_cmp_ne_u32 vcc, 0, v{t+2}
    s_cmp_gt_u32 s{sPOLL}, 200000
    s_cbranch_scc1 {lab}
    s_cmp_eq_u64 vcc, exec
    s_cbranch_scc0 {lp}
    """)
    a.label(lab)
    a.vmq = save
    a("s_barrier")

a(f"""
v_lshlrev_b32 v{vTMP}, 3, v{L}
s_lshl_b32 s{sT2}, s{sJ}, 16
s_lshl_b32 s{sT1}, s{sW}, 9
s_add_u32 s{sT2}, s{sT2}, s{sT1}
s_add_u32 s{sT2}, s{sT2}, {KVP}
""")
poll(0, sJ, 4, with_dbg=True)
stamp("syncA")
for c in range(16):
    a(f"buffer_load_dwordx2 {vr(vRING+2*c,2)}, v{vTMP}, {srd(S_WS)}, s{sT2} offen sc1", tag="kvp")
    if c < 15: a(f"s_add_u32 s{sT2}, s{sT2}, 4096")
a(f"""
v_lshlrev_b32 v{t}, 2, v{L}
s_lshl_b32 s{sT0}, s{sW}, 8
s_add_u32 s{sT0}, s{sT0}, {ZKV}
v_add_u32 v{t}, s{sT0}, v{t}
v_add_u32 v{t+1}, {ZKV}, v{vTMP}
""")
a.wait_vm("kvp")
st = 1
while st < 16:
    for c in range(0, 16, 2*st):
        for q in range(2): a(f"v_add_f32 v{vRING+2*c+q}, v{vRING+2*c+q}, v{vRING+2*(c+st)+q}")
    st *= 2
a(f"""
v_cvt_pk_bf16_f32 v{vRING+4}, v{vRING}, v{vRING+1}
ds_write_b32 v{t}, v{vRING+4}
s_waitcnt lgkmcnt(0)
s_barrier
""")
for q in range(4): a(f"ds_read_b64 {vr(vRING+2*q,2)}, v{t+1} offset:{512*q}")
a(f"""
s_lshl_b32 s{sT2}, s{sC}, 3
s_add_u32 s{sT2}, s{sT2}, s{sW}
s_lshl_b32 s{sT2}, s{sT2}, 4
s_add_u32 s{sT2}, s{sT2}, s{sJ}
s_lshl_b32 s{sT2}, s{sT2}, 10
s_add_u32 s{sT2}, s{sT2}, {OFR}
s_waitcnt lgkmcnt(0)
""")
for q in (1, 3, 0, 2):
    a(f"v_mfma_f32_16x16x16_bf16 {vr(vACC+4*q,4)}, {vr(vRING+2*q,2)}, {vr(vKEEP+2*(q>>1),2)}, 0")
for h in range(2):
    a(f"v_add_f32 v{vE+8+h}, 0x358637bd, v{vACC+8*h+4}\nv_rcp_f32 v{vE+8+h}, v{vE+8+h}")
for h in range(2):
    for r in range(4): a(f"v_mul_f32 v{vACC+8*h+r}, v{vACC+8*h+r}, v{vE+8+h}")
    a(f"v_cvt_pk_bf16_f32 v{vE+12+2*h}, v{vACC+8*h}, v{vACC+8*h+1}\nv_cvt_pk_bf16_f32 v{vE+13+2*h}, v{vACC+8*h+2}, v{vACC+8*h+3}")
a(f"buffer_store_dwordx4 {vr(vE+12,4)}, v{vL16}, {srd(S_WS)}, s{sT2} offen sc1")
flag_store(1, sC, sJ)
stamp("opub")
for it in (1, 2): emit_stream(raw_stream(S_W1, vRAW1+16*it, pre_w1(it), 2752, "w1", vGO))
a(f"""
s_lshl_b32 s{sT2}, s{sMT}, 4
s_lshl_b32 s{sT1}, s{sKH}, 3
s_add_u32 s{sT2}, s{sT2}, s{sT1}
s_lshl_b32 s{sT2}, s{sT2}, 10
s_add_u32 s{sT2}, s{sT2}, {OFR}
s_lshl_b32 s{sT1}, s{sKH}, 15
v_add_u32 v{vTMP}, s{sT1}, v{vRDA}
""")
poll(1, sC, 8)
stamp("syncB")
for q in range(8):
    a(f"buffer_load_dwordx4 {vr(vA+4*q,4)}, v{vL16}, {srd(S_WS)}, s{sT2} offen offset:{(q%4)*1024} sc1", tag=f"o{q}")
    if q == 3: a(f"s_add_u32 s{sT2}, s{sT2}, 4096")
frags = []
for q in range(8):
    for tl in range(4):
        frags.append((vTMP, (q*4+tl)*1024, vACC+4*tl, vA+4*q, True, q == 0, f"o{q}" if tl == 0 else None))
mfma_loop(frags)
def exchange(base):
    t = vE + 6
    l0 = a.newlabel("L_ex0"); l1 = a.newlabel("L_ex1")
    a(f"""
    s_lshl_b32 s{sT0}, s{sW}, 11
    s_add_u32 s{sT0}, s{sT0}, {base}
    v_add_u32 v{t}, s{sT0}, v{vL16}
    s_xor_b32 s{sT1}, s{sW}, 4
    s_lshl_b32 s{sT1}, s{sT1}, 11
    s_add_u32 s{sT1}, s{sT1}, {base}
    v_add_u32 v{t+1}, s{sT1}, v{vL16}
    s_nop 4
    s_cmp_eq_u32 s{sKH}, 0
    s_cbranch_scc0 {l0}
    """)
    a(f"ds_write_b128 v{t}, {vr(vACC+8,4)}\nds_write_b128 v{t}, {vr(vACC+12,4)} offset:1024", track=False)
    for q in range(8): a(f"v_mov_b32 v{vACC+16+q}, v{vACC+q}")
    a(f"s_branch {l1}")
    a.label(l0)
    a(f"ds_write_b128 v{t}, {vr(vACC,4)}\nds_write_b128 v{t}, {vr(vACC+4,4)} offset:1024", track=False)
    for q in range(8): a(f"v_mov_b32 v{vACC+16+q}, v{vACC+8+q}")
    a.label(l1)
    a("s_waitcnt lgkmcnt(0)\ns_barrier")
    a(f"ds_read_b128 {vr(vACC,4)}, v{t+1}\nds_read_b128 {vr(vACC+4,4)}, v{t+1} offset:1024\ns_waitcnt lgkmcnt(0)")
    for q in range(8): a(f"v_add_f32 v{vACC+16+q}, v{vACC+16+q}, v{vACC+q}")
exchange(XB + 65536)
def add_resid(src, dst):
    for d in range(4):
        x0 = vE + 8 + 2*(d & 1)
        a(f"""
        v_lshlrev_b32 v{x0}, 16, v{src+d}
        v_and_b32 v{x0+1}, 0xffff0000, v{src+d}
        v_add_f32 v{x0}, v{x0}, v{vACC+16+2*d}
        v_add_f32 v{x0+1}, v{x0+1}, v{vACC+17+2*d}
        v_cvt_pk_bf16_f32 v{dst+d}, v{x0}, v{x0+1}
        """)
a.wait_vm("xr")
add_resid(vXR, vKEEP)
a(f"""
s_lshr_b32 s{sT1}, s{sCOL}, 6
s_add_u32 s{sT1}, s{sT1}, s{sKH}
s_lshl_b32 s{sT2}, s{sMT}, 4
s_add_u32 s{sT2}, s{sT2}, s{sT1}
s_lshl_b32 s{sT2}, s{sT2}, 10
s_add_u32 s{sT2}, s{sT2}, {HFR}
""")
a(f"buffer_store_dwordx4 {vr(vKEEP,4)}, v{vL16}, {srd(S_WS)}, s{sT2} offen sc1")
a(f"v_mov_b32 v{vE+8}, 0\nv_mov_b32 v{vE+9}, 0")
for d in range(4):
    a(f"v_dot2c_f32_bf16 v{vE+8}, s{sONES}, v{vKEEP+d}\nv_dot2c_f32_bf16 v{vE+9}, v{vKEEP+d}, v{vKEEP+d}")
greduce(vE+8, vE+9)
a(f"""
v_lshlrev_b32 v{t}, 7, v{I}
s_lshl_b32 s{sT2}, s{sMT}, 11
s_lshl_b32 s{sT1}, s{sT1}, 3
s_add_u32 s{sT2}, s{sT2}, s{sT1}
s_add_u32 s{sT2}, s{sT2}, {HST}
s_mov_b64 s[{sEX}:{sEX+1}], exec
s_mov_b64 exec, 0xffff
""")
a(f"buffer_store_dwordx2 {vr(vE+8,2)}, v{t}, {srd(S_WS)}, s{sT2} offen sc1")
a(f"s_mov_b64 exec, s[{sEX}:{sEX+1}]")
flag_store(2, sC, sJ)
stamp("hpub")
emit_stream(raw_stream(S_W2, vRAW2, pre_A(3), 1024, "w2a", vGO2) + raw_stream(S_W2, vRAW2+16, pre_A(4), 1024, "w2a", vGO2))
a("s_barrier")
stageB_waddr(False)
stage_iters(vRAW1, 3, False, 16384)
a("s_barrier")
colsum(False, 1, 7, -1)
a(f"v_lshlrev_b32 v{vTMP}, 4, v{G}")
for it in range(3):
    a(f"s_add_u32 s{sT2}, s{sP0}, {it}\ns_min_u32 s{sT2}, s{sT2}, 42\ns_lshl_b32 s{sT2}, s{sT2}, 6")
    a(f"buffer_load_dwordx4 {vr(vE+12+4*it,4)}, v{vTMP}, {srd(S_B1)}, s{sT2} offen", tag="b1")
a(f"s_add_u32 s{sT2}, s{sW}, 24")
stageA_waddr(sT2)
a.wait_vm("w2a")
perm(vRAW2, vRING); lds_put(vRING, False, 1024); bump_wa(4, 32768)
a(f"s_cmp_eq_u32 s{sW}, 7\ns_cbranch_scc1 L_now2a")
perm(vRAW2 + 16, vRING+16); lds_put(vRING+16, False, 1024)
a.label("L_now2a")
a("s_waitcnt lgkmcnt(0)")
a.wait_vm("b1")
for q in range(12): a(f"v_mov_b32 v{vB1+q}, v{vE+12+q}")
a(f"""
s_lshl_b32 s{sT2}, s{sC}, 3
s_add_u32 s{sT2}, s{sT2}, s{sW}
s_lshl_b32 s{sPF}, s{sT2}, 11
s_add_u32 s{sPF}, s{sPF}, {HST}
s_lshl_b32 s{sT2}, s{sT2}, 14
s_add_u32 s{sT2}, s{sT2}, {HFR}
v_lshlrev_b32 v{vTMP}, 7, v{I}
v_lshl_add_u32 v{vTMP}, v{G}, 5, v{vTMP}
""")
stamp("w1staged")
poll(2, sC, 8)
stamp("syncC")
a(f"buffer_load_dwordx4 {vr(vE+8,4)}, v{vTMP}, {srd(S_WS)}, s{sPF} offen sc1", tag="hst")
a(f"buffer_load_dwordx4 {vr(vE+12,4)}, v{vTMP}, {srd(S_WS)}, s{sPF} offen offset:16 sc1", tag="hst")
for s in range(16):
    a(f"buffer_load_dwordx4 {vr(vA+4*s,4)}, v{vL16}, {srd(S_WS)}, s{sT2} offen offset:{(s%4)*1024} sc1", tag=f"h{s}")
    if s % 4 == 3 and s < 15: a(f"s_add_u32 s{sT2}, s{sT2}, 4096")
a(f"v_lshlrev_b32 v{vTMP}, 4, v{G}\nv_add_u32 v{vTMP}, {ZCS}, v{vTMP}")
for aa in range(2): a(f"ds_read_b128 {vr(vE+16+4*aa,4)}, v{vTMP} offset:{64*aa}", tag="cs0")
a.wait_vm("hst")
a(f"""
v_add_f32 v{vS1}, v{vE+8}, v{vE+10}
v_add_f32 v{vS2}, v{vE+9}, v{vE+11}
v_add_f32 v{vE+12}, v{vE+12}, v{vE+14}
v_add_f32 v{vE+13}, v{vE+13}, v{vE+15}
v_add_f32 v{vS1}, v{vS1}, v{vE+12}
v_add_f32 v{vS2}, v{vS2}, v{vE+13}
""")
stats_final()
a(f"s_lshl_b32 s{sT0}, s{sC}, 3\ns_add_u32 s{sT0}, s{sT0}, s{sW}\ns_mul_i32 s{sT0}, s{sT0}, 43")
def epi3(p, csbase):
    def chain(aa, r):
        ac = vACC + 4*(2*p+aa) + r
        bsrc = vB1 + 4*p + 2*aa + (r >> 1)
        x0, x1, x2 = vE+8+3*(r&1), vE+9+3*(r&1), vE+10+3*(r&1)
        cs = csbase + 4*aa + r
        return [f"v_lshlrev_b32 v{x0}, 16, v{bsrc}" if r % 2 == 0 else f"v_and_b32 v{x0}, 0xffff0000, v{bsrc}",
            f"v_fma_f32 v{x0}, -v{vS1}, v{cs}, v{x0}",
            f"v_fma_f32 v{ac}, v{ac}, v{vS2}, v{x0}",
            f"v_mul_f32 v{x1}, 0x3fb8aa3b, v{ac}",
            f"v_min_f32 v{x1}, 0x42200000, v{x1}",
            f"v_exp_f32 v{x1}, v{x1}",
            f"v_add_f32 v{x2}, 2.0, v{x1}",
            f"v_mul_f32 v{x1}, v{x1}, v{x2}",
            f"v_add_f32 v{x2}, 2.0, v{x1}",
            f"v_rcp_f32 v{x2}, v{x2}",
            f"v_mul_f32 v{ac}, v{ac}, v{x1}",
            f"v_mul_f32 v{ac}, v{ac}, v{x2}"]
    out = []
    for aa in range(2):
        for r in (0, 2):
            c0, c1 = chain(aa, r), chain(aa, r+1)
            for x, y in zip(c0, c1): out += [x, y]
    for d in range(4):
        b = vACC + 8*p + 2*d
        out.append(f"v_cvt_pk_bf16_f32 v{vACC+8*p+d}, v{b}, v{b+1}")
    return out
def epi3_store(p):
    a(f"s_add_u32 s{sT2}, s{sP0}, {p}\ns_min_u32 s{sT2}, s{sT2}, 42\ns_add_u32 s{sT2}, s{sT2}, s{sT0}\ns_lshl_b32 s{sT2}, s{sT2}, 10\ns_add_u32 s{sT2}, s{sT2}, {AFR}")
    a(f"buffer_store_dwordx4 {vr(vACC+8*p,4)}, v{vL16}, {srd(S_WS)}, s{sT2} offen sc1")
frags = []
for s in range(16):
    for tl in range(4):
        frags.append((vRDA, tl*16384 + s*1024, vACC+4*tl, vA+4*s, True, s == 0, f"h{s}" if tl == 0 else None))
nA = len(frags)
for s in range(16):
    for tl in range(4, 6):
        frags.append((vRDB, (tl-4)*16384 + s*1024, vACC+4*tl, vA+4*s, True, s == 0, None))
e0 = epi3(0, vE+16)
extra = {}
for f in range(nA + 3, len(frags)):
    extra[f] = [e0.pop(0) for _ in range(2) if e0]
pf = []
for it in range(3): pf += raw_stream(S_W2, vW2B+16*it, pre_A(it), 1024, "w2b", vGO2)
pf += raw_stream(S_W2, vOV, pre_ov, 1024, "w2b", vGO2)
mfma_loop(frags, extra, pf=pf, pf_start=8, pf_every=3)
stamp("p3loop")
for p in (1, 2):
    for aa in range(2):
        a(f"ds_read_b128 {vr(vRING+8*(p-1)+4*aa,4)}, v{vTMP} offset:{64*(2*p+aa)}", tag=f"cs{p}")
for e in e0: a(e)
epi3_store(0)
for p in (1, 2):
    a.wait_lg(f"cs{p}")
    for e in epi3(p, vRING+8*(p-1)): a(e)
    epi3_store(p)
flag_store(3, sC, sJ)
stamp("apub")
a("s_barrier")
stageA_waddr(sW)
stage_iters(vW2B, 3, False, 1024)
perm(vOV, vRING)
for q in range(16): a(f"v_mov_b32 v{vOV+q}, v{vRING+q}")
a(f"""
s_add_u32 s{sT1}, s{sW}, 1
s_and_b32 s{sT1}, s{sT1}, 7
s_lshr_b32 s{sT2}, s{sT1}, 1
s_mul_i32 s{sT2}, s{sT2}, 20
s_and_b32 s{sT1}, s{sT1}, 1
s_add_u32 s{sT2}, s{sT2}, s{sT1}
""")
stageA_waddr(sT2)
a(f"s_mul_i32 s{sT2}, s{sMT}, 43\ns_lshl_b32 s{sT2}, s{sT2}, 10\ns_add_u32 s{sT2}, s{sT2}, {AFR}")
stamp("w2staged")
poll(3, sC, 8)
stamp("syncD")
a(f"s_cmp_eq_u32 s{sKH}, 0\ns_cbranch_scc0 L_p4k1")
def p4(kh):
    ks = list(range(20)) + [39, 40] if kh == 0 else list(range(20, 39)) + [41, 42]
    slot = {39: 0, 40: 1, 41: 20, 42: 21}
    n = len(ks)
    cur = 0
    for q, k in enumerate(ks):
        while k*1024 - cur >= 4096:
            step = ((k*1024 - cur) // 4096) * 4096
            a(f"s_add_u32 s{sT2}, s{sT2}, {step}"); cur += step
        a(f"buffer_load_dwordx4 {vr(vA+4*q,4)}, v{vL16}, {srd(S_WS)}, s{sT2} offen offset:{k*1024-cur} sc1", tag=f"a{q}")
    def mk(qs, first):
        fr = []
        for q in qs:
            sl = slot.get(ks[q], ks[q])
            for tl in range(4):
                off = sl*4096 + tl*1024
                fr.append(((vRDA, vRDB, vRDC)[off >> 16], off & 0xffff, vACC+4*tl, vA+4*q, True, first and q == 0, f"a{q}" if tl == 0 else None))
        return fr
    mfma_loop(mk(range(0, 2), True))
    a("s_waitcnt lgkmcnt(0)\ns_barrier")
    lab = a.newlabel("L_noov")
    a(f"s_add_u32 s{sT1}, s{sW}, 1\ns_and_b32 s{sT1}, s{sT1}, 7\ns_cmp_ge_u32 s{sT1}, 4\ns_cbranch_scc1 {lab}")
    lds_put(vOV, False, 1024, track=False)
    a.label(lab)
    mfma_loop(mk(range(2, n-2), False))
    a("s_waitcnt lgkmcnt(0)\ns_barrier")
    mfma_loop(mk(range(n-2, n), False))
vmq_save = list(a.vmq)
p4(0)
a("s_branch L_p4done")
a.label("L_p4k1")
a.vmq = list(vmq_save)
p4(1)
a.label("L_p4done")
a("s_nop 7")
stamp("p4loop")
exchange(XB + 8192)
add_resid(vKEEP, vE+12)
a(f"""
v_lshlrev_b32 v{t}, 10, v{I}
v_lshl_add_u32 v{t}, v{G}, 4, v{t}
s_lshl_b32 s{sT1}, s{sMT}, 14
s_add_u32 s{sT1}, s{sT1}, s{sCOL}
s_lshl_b32 s{sT2}, s{sKH}, 6
s_add_u32 s{sT1}, s{sT1}, s{sT2}
""")
a(f"buffer_store_dwordx4 {vr(vE+12,4)}, v{t}, {srd(S_OUT)}, s{sT1} offen")
if STAMPS:
    a("s_waitcnt vmcnt(0)")
    stamp("end")
    a(f"""
    s_lshl_b32 s{sT0}, s2, 10
    s_lshl_b32 s{sT1}, s{sW}, 7
    s_add_u32 s{sT0}, s{sT0}, s{sT1}
    s_add_u32 s{sT0}, s{sT0}, {STAMP}
    s_mov_b64 exec, 1
    """)
    a(f"v_mov_b32 v{vE+8}, s100\nbuffer_store_dword v{vE+8}, v{vZERO}, {srd(S_WS)}, s{sT0} offen offset:124\ns_nop 1")
    for n in range(nstamp[0]):
        a(f"v_mov_b32 v{vE+8}, s{64+2*n}\nbuffer_store_dword v{vE+8}, v{vZERO}, {srd(S_WS)}, s{sT0} offen offset:{4*n}\ns_nop 1")
a.label("L_end")
a("s_endpgm")
a.raw(f""".section .rodata,"a"
.p2align 6
.amdhsa_kernel {KNAME}
  .amdhsa_next_free_vgpr 256
  .amdhsa_next_free_sgpr 102
  .amdhsa_accum_offset 256
  .amdhsa_group_segment_fixed_size 0
  .amdhsa_kernarg_size 80
  .amdhsa_user_sgpr_count 2
  .amdhsa_user_sgpr_kernarg_segment_ptr 1
  .amdhsa_system_sgpr_workgroup_id_x 1
.end_amdhsa_kernel""")
open(OUTF, "w").write(a.text())
print("stamps:", nstamp[0], stamp_names)
```

```python
import sys
from asmgen import Asm
KNAME = "sequential_preLN__linear_attn_block__dense_activation_mish__prompt_kernel"
STAMPS = "--stamps" in sys.argv
ONLY = [x.split("=")[1].split(",") for x in sys.argv if x.startswith("--only=")]
OUTF = [a for a in sys.argv[1:] if not a.startswith("--")][0]

FLAGS = 0; KVP = 0x40000; ZP = 0xC0000; OFR = 0x200000; HFR = 0x400000; AFR = 0x600000; HST = 0xC00000
RW1 = 0xD00000
RWO = 0xE80000
RW2 = 0xF00000
RW2S = 176*1024
STAMP = 0x1100000
RQ = 0x1200000
ZB = 159744; ZCS = ZB; ZKV = ZB + 1024; ZZ = ZB + 2048; ZFL = ZB + 3072
KVS = 98304
RPS = 131072
S_X, S_WQKV, S_WO, S_W1, S_B1, S_W2, S_OUT, S_DBG, S_WS = 8, 12, 16, 20, 24, 28, 32, 36, 40
sC, sJ, sW = 44, 45, 46
sT0, sT1, sT2, sPF, sPF2, sCOL = 47, 48, 49, 50, 51, 52
sMT, sKH, sMW = 53, 54, 55
sPU = 56; sPOLL = 57; sEX = 58
sSELLO, sSELHI, sONES = 60, 61, 62
sXO, sXR, sROT, sWM, sPH, sJJ = 63, 3, 4, 5, 6, 7
sEP = 59; sEX = 90; sRW = 92
ZEP = ZB + 3200
def srd(b): return f"s[{b}:{b+3}]"
vL16, vRDA, vL16B, vL16C, vRDX, vRDB, vZERO = 1, 2, 3, 4, 5, 6, 7
vRDY = 0
vWA = 8; vGO = 16; vS1, vS2, vTMP = 17, 18, 19
vKEEP = 20; vRING = 24; vACC = 56; vE = 80; vA = 104
vBP = 208; vRAW1 = 216; vRP = 192; vB1 = 192
def vr(b, n): return f"v[{b}:{b+n-1}]"

a = Asm()
PD = 8
XP1 = int([x.split('=')[1] for x in sys.argv if x.startswith('--xp1=')][0]) if any(x.startswith('--xp1=') for x in sys.argv) else 16
nstamp = [0]; stamp_names = []
def fstamp(n):
    if "--fine" in sys.argv:
        a(f"s_waitcnt lgkmcnt(0)\ns_memrealtime s[{64+2*n}:{65+2*n}]\ns_waitcnt lgkmcnt(0)")
        nstamp[0] = max(nstamp[0], n+1)
def stamp(name=""):
    if not STAMPS: return
    if ONLY and name not in ONLY[0]: return
    n = nstamp[0]; nstamp[0] += 1; stamp_names.append(name)
    if "--fine" in sys.argv: n = {"b1": 5, "end": 10}[name]; nstamp[0] = 11
    assert n < 13
    a(f"s_waitcnt lgkmcnt(0)\ns_memrealtime s[{64+2*n}:{65+2*n}]\ns_waitcnt lgkmcnt(0)")

hdr = open("sequential_preLN__linear_attn_block__dense_activation_mish__prompt.s.ref").read().split("; @launch")[0]
a.raw(hdr + "; @launch grid=(256,1,1) block=(512,1,1) lds=163840")
a.raw(f'.amdgcn_target "amdgcn-amd-amdhsa--gfx950"\n.text\n.globl {KNAME}\n.p2align 8\n.type {KNAME},@function')
a.label(KNAME)
L, I, G, CB, RV, XRD = vE, vE+1, vE+2, vE+3, vE+4, vE+5
t = vE + 6
a("s_cmp_ge_u32 s2, 256\ns_cbranch_scc1 L_end")
if STAMPS: a("s_memrealtime s[100:101]\ns_memtime s[98:99]")
a(f"""
s_load_dwordx4 s[64:67], s[0:1], 0
s_load_dwordx2 s[68:69], s[0:1], 16
s_load_dwordx4 s[72:75], s[0:1], 32
s_load_dwordx4 s[76:79], s[0:1], 48
s_load_dwordx4 s[80:83], s[0:1], 64
s_and_b32 s3, s2, 7
s_lshl_b32 s3, s3, 1
s_lshr_b32 s4, s2, 7
s_add_u32 s{sC}, s3, s4
s_lshr_b32 s{sJ}, s2, 3
s_and_b32 s{sJ}, s{sJ}, 15
v_lshrrev_b32 v{vTMP}, 6, v0
v_and_b32 v{L}, 63, v0
v_readfirstlane_b32 s{sW}, v{vTMP}
s_mov_b32 s{sSELLO}, 0x05040100
s_mov_b32 s{sSELHI}, 0x07060302
s_mov_b32 s{sONES}, 0x3f803f80
v_mov_b32 v{vZERO}, 0
v_lshlrev_b32 v{vL16}, 4, v{L}
v_and_b32 v{I}, 15, v{L}
v_lshrrev_b32 v{G}, 4, v{L}
v_and_b32 v{CB}, 3, v{L}
v_bfe_u32 v{RV}, v{L}, 2, 2
v_lshrrev_b32 v{t+1}, 3, v{I}
v_and_b32 v{t}, 1, v{G}
v_lshl_or_b32 v{t+1}, v{t}, 1, v{t+1}
v_xor_b32 v{t+1}, v{t+1}, v{I}
v_lshl_add_u32 v{t+1}, v{G}, 4, v{t+1}
v_lshlrev_b32 v{vRDA}, 4, v{t+1}
v_add_u32 v{vRDB}, 0x10000, v{vRDA}
v_xor_b32 v{vRDX}, 64, v{vRDA}
v_add_u32 v{vRDY}, 0x10000, v{vRDX}
v_add_u32 v{vL16B}, 0x10000, v{vL16}
v_add_u32 v{vL16C}, 0x20000, v{vL16}
s_xor_b32 s{sRW}, s{sW}, 4
s_and_b32 s{sMW}, s{sW}, 3
s_lshr_b32 s{sKH}, s{sW}, 2
s_lshl_b32 s{sMT}, s{sC}, 3
s_lshr_b32 s{sT0}, s{sJ}, 3
s_lshl_b32 s{sWM}, s{sT0}, 2
s_add_u32 s{sMT}, s{sMT}, s{sWM}
s_add_u32 s{sMT}, s{sMT}, s{sMW}
s_xor_b32 s{sWM}, s{sWM}, s{sW}
s_and_b32 s{sJJ}, s{sJ}, 7
s_lshl_b32 s{sROT}, s{sJJ}, 1
s_lshl_b32 s{sCOL}, s{sJJ}, 7
s_mul_i32 s{sT0}, s{sJ}, 3
s_and_b32 s{sT1}, s{sJ}, 1
s_add_u32 s{sPU}, s{sT0}, s{sT1}
s_xor_b32 s{sT1}, s{sT1}, 1
s_lshl_b32 s{sT1}, s{sT1}, 1
s_add_u32 s{sPH}, s{sT0}, s{sT1}
s_lshl_b32 s{sT0}, s{sJ}, 1
s_add_u32 s{sT0}, s{sT0}, 10
s_cmp_lt_u32 s{sJ}, 10
s_cselect_b32 s{sPU}, s{sPU}, s{sT0}
s_cselect_b32 s{sPH}, s{sPH}, s{sT0}
s_cmp_eq_u32 s{sJ}, 15
s_cselect_b32 s{sPH}, 42, s{sPH}
""")
def mk_srd(b, lo, nbytes):
    a(f"s_mov_b32 s{b}, s{lo}\ns_and_b32 s{b+1}, s{lo+1}, 0xffff\ns_mov_b32 s{b+2}, {nbytes}\ns_mov_b32 s{b+3}, 0x00020000")
def perm(raw, out):
    for d in range(4):
        for p in range(2):
            a(f"v_perm_b32 v{out+4*d+p}, v{raw+4*(2*p+1)+d}, v{raw+4*(2*p)+d}, s{sSELLO}")
            a(f"v_perm_b32 v{out+4*d+2+p}, v{raw+4*(2*p+1)+d}, v{raw+4*(2*p)+d}, s{sSELHI}")

a(f"""
v_sub_u32 v{t}, 0, v{G}
v_and_b32 v{t}, 3, v{t}
v_xor_b32 v{t}, v{t}, v{CB}
v_lshrrev_b32 v{vGO}, 2, v{L}
v_lshlrev_b32 v{vGO}, 10, v{vGO}
v_lshl_add_u32 v{vGO}, v{t}, 4, v{vGO}
s_lshl_b32 s{sXO}, s{sC}, 3
s_add_u32 s{sXO}, s{sXO}, s{sWM}
s_lshl_b32 s{sXO}, s{sXO}, 14
s_lshl_b32 s{sXR}, s{sW}, 14
s_add_u32 s{sXR}, s{sXR}, 24576
v_lshrrev_b32 v{t}, 2, v{I}
v_sub_u32 v{t}, 0, v{t}
v_and_b32 v{t}, 3, v{t}
v_xor_b32 v{t}, v{t}, v{G}
v_lshlrev_b32 v{t}, 4, v{t}
v_lshl_add_u32 v{t}, v{I}, 6, v{t}
v_add_u32 v{XRD}, s{sXR}, v{t}
v_lshrrev_b32 v{vWA}, 1, v{G}
v_and_b32 v{vWA+1}, 1, v{G}
v_lshlrev_b32 v{vWA+2}, 2, v{RV}
v_lshl_add_u32 v{vWA+2}, v{vWA}, 4, v{vWA+2}
v_lshrrev_b32 v{vWA+3}, 1, v{RV}
v_lshl_add_u32 v{vWA+3}, v{vWA}, 1, v{vWA+3}
v_and_b32 v{vWA+4}, 1, v{RV}
v_mov_b32 v{t}, {ZFL}
ds_write_b32 v{t}, v{vZERO}
ds_write_b32 v{t}, v{vZERO} offset:4
ds_write_b32 v{t}, v{vZERO} offset:8
ds_write_b32 v{t}, v{vZERO} offset:12
s_waitcnt lgkmcnt(0)
""")
def xdma(s_, track=True):
    a(f"s_add_u32 m0, s{sXR}, {s_*1024}\ns_add_u32 s{sPF2}, s{sROT}, {s_}\ns_and_b32 s{sPF2}, s{sPF2}, 15\ns_lshl_b32 s{sPF2}, s{sPF2}, 6\ns_add_u32 s{sPF2}, s{sPF2}, s{sXO}")
    a(f"buffer_load_dwordx4 v{vGO}, {srd(S_X)}, s{sPF2} offen lds", tag=f"xd{s_}", track=track)
mk_srd(S_WQKV, 66, 512*1536*2)
mk_srd(S_WS, 82, 0x10000000)
mk_srd(S_X, 64, 2048*512*2)
mk_srd(S_WO, 68, 512*512*2)
mk_srd(S_W1, 72, 512*1376*2)
mk_srd(S_B1, 74, 1376*2)
mk_srd(S_W2, 76, 1376*512*2)
mk_srd(S_OUT, 78, 2048*512*2)
mk_srd(S_DBG, 80, 256)
def raw4(srdb, go, stride):
    for r in range(4):
        a(f"buffer_load_dwordx4 {vr(vRP+4*r,4)}, v{go}, {srd(srdb)}, s{sPF} offen", track=False)
        if r < 3: a(f"s_add_u32 s{sPF}, s{sPF}, {stride}")
g = t
fstamp(7)
a(f"""
s_cmp_lt_u32 s{sRW}, 4
s_cbranch_scc1 L_rx
s_cmp_eq_u32 s{sRW}, 7
s_cbranch_scc1 L_r7
s_cmp_eq_u32 s{sRW}, 6
s_cbranch_scc1 L_rx
; ---- waves 4,5: wqkv unit. sec = (j odd) ? 2 : (w-4) ; odd j wave 5: no role
s_and_b32 s{sT0}, s{sJ}, 1
s_sub_u32 s{sT1}, s{sRW}, 4
s_cmp_eq_u32 s{sT0}, 1
s_cselect_b32 s{sT2}, 2, s{sT1}             ; sec
s_add_u32 s{sT0}, s{sT2}, 1
s_cmp_eq_u32 s{sT2}, 2
s_cselect_b32 s{sT0}, 0, s{sT0}
s_lshl_b32 s{sT0}, s{sT0}, 10
s_lshr_b32 s{sT1}, s{sJ}, 1
s_lshl_b32 s{sT1}, s{sT1}, 7
s_add_u32 s{sT0}, s{sT0}, s{sT1}
s_mul_i32 s{sPF}, s{sC}, {32*3072}
s_add_u32 s{sPF}, s{sPF}, s{sT0}
s_mov_b32 s{sT0}, 3072
v_mul_lo_u32 v{g}, v{vWA+2}, s{sT0}
v_lshl_add_u32 v{g}, v{vWA+1}, 6, v{g}
v_lshl_add_u32 v{g}, v{CB}, 4, v{g}
""")
raw4(S_WQKV, g, 3072)
fstamp(8)
a("s_branch L_rx")
a.label("L_r7")
a(f"""
s_cmp_lg_u32 s2, 0
s_cbranch_scc1 L_rx
s_memrealtime s[{sT0+1}:{sT0+2}]
s_waitcnt lgkmcnt(0)
s_or_b32 s{sT1}, s{sT1}, 1
v_mov_b32 v{t+6}, s{sT1}
s_mov_b64 s[{sEX}:{sEX+1}], exec
s_mov_b64 exec, 1
""")
a(f"buffer_store_dword v{t+6}, v{vZERO}, {srd(S_DBG)}, 0 offen sc1", track=False)
a(f"s_mov_b64 exec, s[{sEX}:{sEX+1}]\ns_branch L_rx")
a.label("L_rx")
for s in range(XP1): xdma(s, track=False)
fstamp(9)
def get_epoch():
    lp = a.newlabel("L_ep"); lx = a.newlabel("L_epx")
    a(f"s_mov_b32 s{sPOLL}, 0")
    a.label(lp)
    a(f"buffer_load_dword v{t+2}, v{vZERO}, {srd(S_DBG)}, 0 offen sc1", track=False)
    a(f"""
    s_add_u32 s{sPOLL}, s{sPOLL}, 1
    s_waitcnt vmcnt(0)
    v_readfirstlane_b32 s{sEP}, v{t+2}
    s_cmp_gt_u32 s{sPOLL}, 200000
    s_cbranch_scc1 {lx}
    s_cmp_eq_u32 s{sEP}, 0
    s_cbranch_scc1 {lp}
    """)
    a.label(lx)
def flag_store(k, grp, mem, wreg=None):
    wreg = sW if wreg is None else wreg
    a(f"""
    s_lshl_b32 s{sT0}, s{grp}, 4
    s_add_u32 s{sT0}, s{sT0}, s{mem}
    s_add_u32 s{sT0}, s{sT0}, {k*256}
    s_lshl_b32 s{sT0}, s{sT0}, 7
    s_lshl_b32 s{sT1}, s{wreg}, 2
    s_add_u32 s{sT0}, s{sT0}, s{sT1}
    v_mov_b32 v{vTMP}, s{sEP}
    s_mov_b64 s[{sEX}:{sEX+1}], exec
    s_mov_b64 exec, 1
    s_waitcnt vmcnt(0)
    """)
    a(f"buffer_store_dword v{vTMP}, v{vZERO}, {srd(S_WS)}, s{sT0} offen sc1", track=False)
    a(f"s_mov_b64 exec, s[{sEX}:{sEX+1}]")
def mfma_loop(frags, extra=None, depth=6, al=None):
    n = len(frags)
    def rd(f):
        ad, off = frags[f][0], frags[f][1]
        a(f"ds_read_b128 {vr(vRING+4*(f%8),4)}, v{ad} offset:{off}", tag=f"bf{f}")
    a("s_setprio 2")
    for f in range(min(depth, n)): rd(f)
    for f in range(n):
        ad, off, acc, areg, tr, first, at = frags[f]
        if at is not None: a.wait_vm(at)
        a.wait_lg(f"bf{f}")
        w = vr(vRING+4*(f%8),4); x = vr(areg,4); c = "0" if first else vr(acc,4)
        if tr: a(f"v_mfma_f32_16x16x32_bf16 {vr(acc,4)}, {w}, {x}, {c}")
        else:  a(f"v_mfma_f32_16x16x32_bf16 {vr(acc,4)}, {x}, {w}, {c}")
        if al and at is not None:
            txt, tg = al.pop(0); a(txt, tag=tg)
        if extra and f in extra:
            for e in extra[f]: a(e)
        if f + depth < n: rd(f + depth)
    a("s_setprio 0")
def greduce(r1, r2):
    for swap in ("v_permlane32_swap_b32", "v_permlane16_swap_b32"):
        a(f"""
        v_mov_b32 v{t}, v{r1}
        v_mov_b32 v{t+1}, v{r2}
        {swap} v{r1}, v{t}
        {swap} v{r2}, v{t+1}
        v_add_f32 v{r1}, v{r1}, v{t}
        v_add_f32 v{r2}, v{r2}, v{t+1}
        """)
def stats_final():
    greduce(vS1, vS2)
    a(f"""
    v_mul_f32 v{vS1}, 0x3b000000, v{vS1}
    v_mul_f32 v{vS2}, 0x3b000000, v{vS2}
    v_fma_f32 v{vS2}, -v{vS1}, v{vS1}, v{vS2}
    v_max_f32 v{vS2}, 0, v{vS2}
    v_add_f32 v{vS2}, 0x3727c5ac, v{vS2}
    v_rsq_f32 v{vS2}, v{vS2}
    v_mul_f32 v{vS1}, v{vS1}, v{vS2}
    """)

def dma4(lds_expr_sgpr, src_sgpr, n=4, tag="dma", track=True):
    a(f"s_mov_b32 m0, s{lds_expr_sgpr}\ns_nop 0")
    for q in range(n):
        a(f"buffer_load_dwordx4 v{vL16}, {srd(S_WS)}, s{src_sgpr} offen offset:{1024*q} sc1 lds", tag=tag, track=track)
def dma_block(lds0, src_base_txt, per_wave_kb, tag="dma"):
    a(f"s_mul_i32 s{sPF2}, s{sW}, {per_wave_kb*1024}\n{src_base_txt}\ns_add_u32 s{sPF}, s{sPF}, s{sPF2}\ns_add_u32 s{sPF2}, s{sPF2}, {lds0}")
    for g in range(per_wave_kb // 4):
        dma4(sPF2, sPF, tag=tag)
        if g < per_wave_kb//4 - 1: a(f"s_add_u32 s{sPF}, s{sPF}, 4096\ns_add_u32 s{sPF2}, s{sPF2}, 4096")

def poll(k, grp, mode, with_dbg=False, wave=0, barrier=True):
    lab = a.newlabel("L_pskip"); lp = a.newlabel("L_poll")
    save = list(a.vmq)
    a(f"s_cmp_lg_u32 s{sW}, {wave}\ns_cbranch_scc1 {lab}")
    if mode == "R":
        a(f"""
        v_lshrrev_b32 v{t}, 1, v{L}
        v_and_b32 v{t+1}, 15, v{t}
        v_lshrrev_b32 v{t}, 4, v{t}
        v_lshlrev_b32 v{t}, 3, v{t}
        v_xor_b32 v{t}, s{sJ}, v{t}
        v_lshl_add_u32 v{t}, v{t}, 4, v{t+1}
        v_lshlrev_b32 v{t}, 7, v{t}
        v_and_b32 v{t+1}, 1, v{L}
        v_lshl_add_u32 v{t}, v{t+1}, 3, v{t}
        s_mov_b32 s{sT0}, {k*16*2048}
        s_or_b32 s{sT1}, s{sJ}, 1
        s_lshl_b32 s{sT1}, s{sT1}, 11
        v_lshlrev_b32 v{t+1}, 7, v{I}
        v_add_u32 v{t+1}, s{sT1}, v{t+1}
        """)
    elif mode == "KV":
        a(f"""
        v_lshlrev_b32 v{t}, 7, v{I}
        v_add_u32 v{t}, 16, v{t}
        v_and_b32 v{t+1}, 1, v{G}
        v_lshl_add_u32 v{t}, v{t+1}, 11, v{t}
        s_and_b32 s{sT0}, s{sJ}, 14
        s_add_u32 s{sT0}, s{sT0}, {k*16}
        s_lshl_b32 s{sT0}, s{sT0}, 11
        v_mov_b32 v{t+5}, -1
        v_subrev_u32 v{t+6}, 1, v{t+1}
        """)
    else:
        a(f"""
        v_lshrrev_b32 v{t}, 2, v{L}
        v_lshlrev_b32 v{t}, 7, v{t}
        v_lshl_add_u32 v{t}, v{CB}, 3, v{t}
        s_add_u32 s{sT0}, s{grp}, {k*16}
        s_lshl_b32 s{sT0}, s{sT0}, 11
        """)
    a(f"s_mov_b32 s{sPOLL}, 0")
    if mode == "A":
        a(f"v_cmp_gt_u32 vcc, 2, v{CB}\nv_cndmask_b32 v{t+5}, -1, 0, vcc\nv_cmp_eq_u32 vcc, 0, v{CB}\nv_cndmask_b32 v{t+6}, -1, 0, vcc")
    a.label(lp)
    a(f"buffer_load_dwordx2 {vr(t+2,2)}, v{t}, {srd(S_WS)}, s{sT0} offen sc1", track=False)
    if with_dbg: a(f"buffer_load_dword v{t+4}, v{t+1}, {srd(S_DBG)}, 0 offen sc1", track=False)
    if mode == "R": a(f"buffer_load_dword v{t+4}, v{t+1}, {srd(S_WS)}, s{sT0} offen offset:16 sc1", track=False)
    a(f"s_add_u32 s{sPOLL}, s{sPOLL}, 1\ns_waitcnt vmcnt(0)")
    a(f"v_xor_b32 v{t+2}, s{sEP}, v{t+2}\nv_xor_b32 v{t+3}, s{sEP}, v{t+3}")
    if mode in ("A", "KV"): a(f"v_and_b32 v{t+2}, v{t+2}, v{t+5}\nv_and_b32 v{t+3}, v{t+3}, v{t+6}")
    a(f"v_or_b32 v{t+2}, v{t+2}, v{t+3}")
    if mode == "R": a(f"v_xor_b32 v{t+4}, s{sEP}, v{t+4}\nv_or_b32 v{t+2}, v{t+2}, v{t+4}")
    a(f"""
    v_cmp_eq_u32 vcc, 0, v{t+2}
    s_cmp_gt_u32 s{sPOLL}, 200000
    s_cbranch_scc1 {lab}
    s_cmp_eq_u64 vcc, exec
    s_cbranch_scc0 {lp}
    """)
    a.label(lab)
    a.vmq = save
    if barrier: a("s_barrier")

def assemble(nat, skip_hi_wave=None, base=0, wr=None):
    wr = sRW if wr is None else wr
    a(f"s_lshl_b32 s{sT0}, s{wr}, 12\ns_add_u32 s{sT0}, s{sT0}, {base}\nv_lshlrev_b32 v{t}, 8, v{vWA+3}\nv_lshl_add_u32 v{t}, v{vWA+4}, 3, v{t}\nv_add_u32 v{t}, s{sT0}, v{t}\nv_add_u32 v{t+1}, s{sT0}, v{vL16}")
    if nat:
        a(f"""
        v_lshl_add_u32 v{t}, v{vWA+1}, 11, v{t}
        v_lshrrev_b32 v{t+2}, 1, v{CB}
        v_lshl_add_u32 v{t}, v{t+2}, 10, v{t}
        v_and_b32 v{t+2}, 1, v{CB}
        v_lshl_add_u32 v{t}, v{t+2}, 7, v{t}
        """)
    else:
        a(f"""
        s_cmp_eq_u32 s{wr}, 1
        s_cselect_b32 s{sT0}, 0, 1
        v_mul_lo_u32 v{t+2}, v{vWA+1}, s{sT0}
        v_lshl_add_u32 v{t}, v{t+2}, 11, v{t}
        v_lshl_add_u32 v{t}, v{CB}, 6, v{t}
        """)
    perm(vRP, vRING)
    for u in range(8):
        off = 16*u if nat else (u>>2)*1024 + (u&3)*16
        a(f"ds_write_b64 v{t}, {vr(vRING+2*u,2)} offset:{off}")
    a("s_waitcnt lgkmcnt(0)")
    for q in range(4): a(f"ds_read_b128 {vr(vRING+16+4*q,4)}, v{t+1} offset:{1024*q}")
    a("s_waitcnt lgkmcnt(0)")
    lf = a.newlabel("L_asf")
    for q in range(4):
        if q == 2 and skip_hi_wave is not None: a(f"s_cmp_eq_u32 s{wr}, {skip_hi_wave}\ns_cbranch_scc1 {lf}")
        a(f"buffer_store_dwordx4 {vr(vRING+16+4*q,4)}, v{vL16}, {srd(S_WS)}, s{sT2} offen sc1", track=False)
        if q < 3: a(f"s_add_u32 s{sT2}, s{sT2}, s{sPF2}")
    a.label(lf)

a(f"""
s_cmp_lt_u32 s{sRW}, 4
s_cbranch_scc1 L_apoll
s_cmp_ge_u32 s{sRW}, 6
s_cbranch_scc1 L_apoll
; waves 4,5
s_and_b32 s{sT0}, s{sJ}, 1
s_sub_u32 s{sT1}, s{sRW}, 4
s_add_u32 s{sT2}, s{sT0}, s{sT1}
s_cmp_eq_u32 s{sT2}, 2
s_cbranch_scc1 L_a45x
s_cmp_eq_u32 s{sT0}, 1
s_cselect_b32 s{sT2}, 2, s{sT1}
s_lshl_b32 s{sT2}, s{sT2}, 16
s_lshr_b32 s{sT1}, s{sJ}, 1
s_mul_i32 s{sT1}, s{sT1}, {192*1024}
s_add_u32 s{sT2}, s{sT2}, s{sT1}
s_lshl_b32 s{sT1}, s{sC}, 10
s_add_u32 s{sT2}, s{sT2}, s{sT1}
s_add_u32 s{sT2}, s{sT2}, {RQ}
s_mov_b32 s{sPF2}, 16384
s_waitcnt vmcnt({XP1})
""")
fstamp(0)
assemble(True)
fstamp(1)
get_epoch()
fstamp(3)
flag_store(4, sJ, sC, sRW)
fstamp(4)
a.label("L_a45x")
a.label("L_apoll")
a.label("L_b0")
a("s_barrier")
def xrd(lo, hi):
    for s_ in range(lo, hi): a(f"ds_read_b128 {vr(vA+4*s_,4)}, v{XRD} offset:{s_*1024}")
    a("s_waitcnt lgkmcnt(0)")
for s in range(XP1, 16): xdma(s, track=False)
a("s_waitcnt vmcnt(0)")
a(f"s_cmp_ge_u32 s{sW}, 4\ns_cbranch_scc1 L_n03")
a.label("L_r03")
a(f"""
s_cmp_ge_u32 s{sW}, 2
s_cbranch_scc1 L_r23
s_mov_b32 s{sT0}, 2752
v_mul_lo_u32 v{g}, v{vWA+2}, s{sT0}
s_xor_b32 s{sT0}, s{sW}, 1
v_mul_lo_u32 v{g+1}, v{vWA+1}, s{sT0}
v_lshl_add_u32 v{g}, v{g+1}, 6, v{g}
v_lshl_add_u32 v{g}, v{CB}, 4, v{g}
s_cmp_eq_u32 s{sW}, 0
s_cselect_b32 s{sT0}, s{sPU}, s{sPH}
s_lshl_b32 s{sT0}, s{sT0}, 6
s_mul_i32 s{sPF}, s{sC}, {32*2752}
s_add_u32 s{sPF}, s{sPF}, s{sT0}
""")
raw4(S_W1, g, 2752)
a("s_branch L_r03e")
a.label("L_r23")
a(f"""
s_lshr_b32 s{sT0}, s{sJ}, 3
s_add_u32 s{sT1}, s{sT0}, s{sW}
s_cmp_eq_u32 s{sT1}, 2
s_cbranch_scc0 L_rw2
v_lshlrev_b32 v{g}, 2, v{vWA+3}
v_lshl_add_u32 v{g}, v{vWA+4}, 4, v{g}
v_lshlrev_b32 v{g}, 10, v{g}
v_lshl_add_u32 v{g}, v{vWA+1}, 6, v{g}
v_lshl_add_u32 v{g}, v{CB}, 4, v{g}
s_lshl_b32 s{sPF}, s{sC}, 15
s_add_u32 s{sPF}, s{sPF}, s{sCOL}
""")
raw4(S_WO, g, 1024)
a("s_branch L_r03e")
a.label("L_rw2")
a(f"""
s_sub_u32 s{sT1}, s{sW}, 1
s_mul_i32 s{sT1}, s{sT1}, s{sT0}
s_lshl_b32 s{sT1}, s{sT1}, 4
s_add_u32 s{sT1}, s{sT1}, s{sC}
v_lshlrev_b32 v{g}, 10, v{vWA+2}
v_lshl_add_u32 v{g}, v{vWA+1}, 6, v{g}
v_lshl_add_u32 v{g}, v{CB}, 4, v{g}
s_lshl_b32 s{sPF}, s{sT1}, 15
s_add_u32 s{sPF}, s{sPF}, s{sCOL}
""")
raw4(S_W2, g, 1024)
a.label("L_r03e")
a.label("L_n03")
xrd(0, 16)
a(f"s_lshl_b32 s{sXR}, s{sW}, 12\ns_add_u32 s{sXR}, s{sXR}, 98304")
a(f"v_mov_b32 v{vS1}, 0\nv_mov_b32 v{vS2}, 0\nv_mov_b32 v{vE+8}, 0\nv_mov_b32 v{vE+9}, 0")
def dots(lo, hi):
    for d in range(lo, hi, 2):
        a(f"v_dot2c_f32_bf16 v{vS1}, s{sONES}, v{vA+d}\nv_dot2c_f32_bf16 v{vS2}, v{vA+d}, v{vA+d}")
        a(f"v_dot2c_f32_bf16 v{vE+8}, s{sONES}, v{vA+d+1}\nv_dot2c_f32_bf16 v{vE+9}, v{vA+d+1}, v{vA+d+1}")
dots(0, 64)
a(f"v_add_f32 v{vS1}, v{vS1}, v{vE+8}\nv_add_f32 v{vS2}, v{vS2}, v{vE+9}")
stats_final()
a(f"v_lshlrev_b32 v{t}, 4, v{G}")
for r in range(4):
    a(f"ds_bpermute_b32 v{vBP+r}, v{t}, v{vS2} offset:{4*r}")
    a(f"ds_bpermute_b32 v{vBP+4+r}, v{t}, v{vS1} offset:{4*r}")
a("s_waitcnt lgkmcnt(0)")
a(f"s_cmp_lg_u32 s{sRW}, 6\ns_cbranch_scc1 L_b1")
fstamp(2)
get_epoch()
fstamp(3)
a(f"v_mov_b32 v{t}, {ZEP}\nv_mov_b32 v{t+1}, s{sEP}\nds_write_b32 v{t}, v{t+1}\ns_waitcnt lgkmcnt(0)")
poll(4, sJ, "KV", wave=2, barrier=False)
fstamp(4)
a.label("L_b1")
a.vmq = []
a("s_barrier")
stamp("b1")
a(f"v_mov_b32 v{t}, {ZEP}\nds_read_b32 v{t+1}, v{t}\ns_waitcnt lgkmcnt(0)\nv_readfirstlane_b32 s{sEP}, v{t+1}")
def wq_dma(lds_tile_sgpr_txt, sec_tile_txt, q0_txt, ngroups):
    a(lds_tile_sgpr_txt + "\n" + sec_tile_txt + "\n" + q0_txt)
    for gi in range(ngroups):
        a(f"""
        s_add_u32 s{sPF}, s{sT2}, {2*gi}
        s_lshl_b32 s{sPF2}, s{sPF}, 10
        s_add_u32 m0, s{sPF2}, s{sT0}
        s_add_u32 s{sPF}, s{sPF}, s{sROT}
        s_and_b32 s{sPF}, s{sPF}, 15
        s_lshl_b32 s{sPF}, s{sPF}, 10
        s_add_u32 s{sPF}, s{sPF}, s{sT1}
        """)
        for q in range(2):
            a(f"buffer_load_dwordx4 v{vL16}, {srd(S_WS)}, s{sPF} offen offset:{1024*q} sc1 lds", tag="dwq")
srcbase = f"s_lshr_b32 s{sT1}, s{sJ}, 1\ns_mul_i32 s{sT1}, s{sT1}, {192*1024}\ns_and_b32 s{sPF}, s{sJ}, 1\ns_lshl_b32 s{sPF}, s{sPF}, 15\ns_add_u32 s{sT1}, s{sT1}, s{sPF}\ns_add_u32 s{sT1}, s{sT1}, {RQ}"
wq_dma(f"s_lshr_b32 s{sT0}, s{sW}, 1\ns_lshl_b32 s{sT0}, s{sT0}, 14",
       srcbase + f"\ns_lshr_b32 s{sPF}, s{sW}, 2\ns_lshl_b32 s{sPF}, s{sPF}, 16\ns_add_u32 s{sT1}, s{sT1}, s{sPF}\ns_lshr_b32 s{sPF}, s{sW}, 1\ns_and_b32 s{sPF}, s{sPF}, 1\ns_lshl_b32 s{sPF}, s{sPF}, 14\ns_add_u32 s{sT1}, s{sT1}, s{sPF}",
       f"s_and_b32 s{sT2}, s{sW}, 1\ns_lshl_b32 s{sT2}, s{sT2}, 3", 4)
wq_dma(f"s_lshr_b32 s{sT0}, s{sW}, 2\ns_lshl_b32 s{sT0}, s{sT0}, 14\ns_add_u32 s{sT0}, s{sT0}, 65536",
       srcbase + f"\ns_add_u32 s{sT1}, s{sT1}, {2*65536}\ns_lshr_b32 s{sPF}, s{sW}, 2\ns_lshl_b32 s{sPF}, s{sPF}, 14\ns_add_u32 s{sT1}, s{sT1}, s{sPF}",
       f"s_and_b32 s{sT2}, s{sW}, 3\ns_lshl_b32 s{sT2}, s{sT2}, 2", 2)
a("s_waitcnt vmcnt(4)\ns_barrier")
stamp("kvstaged")

def colsum(w_lo, w_hi, tile_add=0, flag=False):
    lab = a.newlabel("L_nocs")
    if w_lo > 0: a(f"s_cmp_lt_u32 s{sW}, {w_lo}\ns_cbranch_scc1 {lab}")
    if w_hi < 8: a(f"s_cmp_ge_u32 s{sW}, {w_hi}\ns_cbranch_scc1 {lab}")
    a(f"s_add_u32 s{sT1}, s{sW}, {tile_add & 0xffffffff}")
    a(f"s_lshl_b32 s{sT0}, s{sT1}, 14\nv_add_u32 v{t}, s{sT0}, v{vL16}")
    for q in range(4): a(f"v_mov_b32 v{t+2+q}, s{sONES}")
    for s in range(8): a(f"ds_read_b128 {vr(vRING+4*s,4)}, v{t} offset:{s*1024}", tag=f"cs{s}")
    acc = t + 6
    for s in range(16):
        a.wait_lg(f"cs{s}")
        a(f"v_mfma_f32_16x16x32_bf16 {vr(acc,4)}, {vr(t+2,4)}, {vr(vRING+4*(s%8),4)}, {'0' if s==0 else vr(acc,4)}")
        if s + 8 < 16: a(f"ds_read_b128 {vr(vRING+4*(s%8),4)}, v{t} offset:{(s+8)*1024}", tag=f"cs{s+8}")
    a(f"""
    v_lshlrev_b32 v{t}, 2, v{I}
    s_lshl_b32 s{sT0}, s{sT1}, 6
    s_add_u32 s{sT0}, s{sT0}, {ZCS}
    v_add_u32 v{t}, s{sT0}, v{t}
    ds_write_b32 v{t}, v{acc}
    s_waitcnt lgkmcnt(0)
    """)
    if flag:
        a(f"s_lshl_b32 s{sT0}, s{sT1}, 2\ns_add_u32 s{sT0}, s{sT0}, {ZFL}\nv_mov_b32 v{t}, s{sT0}\nv_mov_b32 v{t+1}, 1\nds_write_b32 v{t}, v{t+1}\ns_waitcnt lgkmcnt(0)")
    a.label(lab)

colsum(4, 8, -4, flag=True)
frags = []
for s_ in range(16):
    for t_ in range(4):
        frags.append((vL16, t_*16384 + s_*1024, vACC+4*t_, vA+4*s_, False, s_ == 0, None))
mfma_loop(frags)
stamp("kvloop")
save = list(a.vmq)
a(f"s_cmp_ge_u32 s{sW}, 4\ns_cbranch_scc1 L_norf")
a.label("L_a03")
a(f"""
s_lshr_b32 s{sT0}, s{sJ}, 3
s_mul_i32 s{sT2}, s{sJ}, {96*1024}
s_lshl_b32 s{sT1}, s{sC}, 10
s_add_u32 s{sT2}, s{sT2}, s{sT1}
s_lshl_b32 s{sT1}, s{sW}, 16
s_add_u32 s{sT2}, s{sT2}, s{sT1}
s_add_u32 s{sT2}, s{sT2}, {RW1}
s_mov_b32 s{sPF2}, 16384
s_cmp_lt_u32 s{sW}, 2
s_cbranch_scc1 L_rpdst
s_mov_b32 s{sPF2}, 1024
s_add_u32 s{sT1}, s{sT0}, s{sW}
s_lshl_b32 s{sT2}, s{sJJ}, 16
s_lshl_b32 s{sPF}, s{sC}, 12
s_add_u32 s{sT2}, s{sT2}, s{sPF}
s_add_u32 s{sT2}, s{sT2}, {RWO}
s_cmp_eq_u32 s{sT1}, 2
s_cbranch_scc1 L_rpdst
s_sub_u32 s{sT1}, s{sW}, 1
s_mul_i32 s{sT1}, s{sT1}, s{sT0}
s_lshl_b32 s{sT1}, s{sT1}, 4
s_add_u32 s{sT1}, s{sT1}, s{sC}
s_min_u32 s{sT1}, s{sT1}, 43
s_lshl_b32 s{sT1}, s{sT1}, 12
s_mul_i32 s{sT2}, s{sJJ}, {RW2S}
s_add_u32 s{sT2}, s{sT2}, s{sT1}
s_add_u32 s{sT2}, s{sT2}, {RW2}
L_rpdst:
s_waitcnt vmcnt(0)
""")
assemble(False, skip_hi_wave=1, base=131072, wr=sW)
flag_store(4, sJ, sC)
a.label("L_norf")
a.vmq = save
a(f"v_lshlrev_b32 v{t}, 4, v{G}\nv_lshlrev_b32 v{t+1}, 2, v{I}\nv_add_u32 v{t+1}, {ZCS}, v{t+1}")
a(f"""
v_mov_b32 v{vE+20}, {ZFL}
s_mov_b32 s{sPOLL}, 0
L_csw:
ds_read_b128 {vr(vE+16,4)}, v{vE+20}
s_add_u32 s{sPOLL}, s{sPOLL}, 1
s_cmp_gt_u32 s{sPOLL}, 100000
s_cbranch_scc1 L_cswx
s_waitcnt lgkmcnt(0)
v_and_b32 v{vE+16}, v{vE+16}, v{vE+17}
v_and_b32 v{vE+18}, v{vE+18}, v{vE+19}
v_and_b32 v{vE+16}, v{vE+16}, v{vE+18}
v_cmp_ne_u32 vcc, 0, v{vE+16}
s_cbranch_vccz L_csw
L_cswx:
s_waitcnt lgkmcnt(0)
""")
def phi2(r0, r1, t0, t1):
    a(f"""
    v_min_f32 v{t0}, 0, v{r0}
    v_min_f32 v{t1}, 0, v{r1}
    v_mul_f32 v{t0}, 0x3fb8aa3b, v{t0}
    v_mul_f32 v{t1}, 0x3fb8aa3b, v{t1}
    v_exp_f32 v{t0}, v{t0}
    v_exp_f32 v{t1}, v{t1}
    v_max_f32 v{r0}, 0, v{r0}
    v_max_f32 v{r1}, 0, v{r1}
    v_add_f32 v{r0}, 0x358637bd, v{r0}
    v_add_f32 v{r1}, 0x358637bd, v{r1}
    v_add_f32 v{r0}, v{r0}, v{t0}
    v_add_f32 v{r1}, v{r1}, v{t1}
    """)
for tl in range(4): a(f"ds_read_b32 v{vE+16+tl}, v{t+1} offset:{64*tl}", tag="bp")
a(f"v_mov_b32 v{vRING+8}, s{sONES}\nv_mov_b32 v{vRING+9}, s{sONES}")
a(f"v_add_u32 v{vRING+10}, s{sXR}, v{vL16}\nv_add_u32 v{vRING+11}, s{sXR}, v{t}")
a("s_waitcnt lgkmcnt(0)")
for tl in range(4):
    for r in range(4):
        ac = vACC + 4*tl + r
        a(f"v_mul_f32 v{vE+20+r}, v{vBP+4+r}, v{vE+16+tl}")
    for r in range(4):
        ac = vACC + 4*tl + r
        a(f"v_fma_f32 v{ac}, v{ac}, v{vBP+r}, -v{vE+20+r}")
    if tl < 2:
        phi2(vACC+4*tl, vACC+4*tl+1, vE+20, vE+21); phi2(vACC+4*tl+2, vACC+4*tl+3, vE+22, vE+23)
    a(f"v_cvt_pk_bf16_f32 v{vRING+2*tl}, v{vACC+4*tl}, v{vACC+4*tl+1}\nv_cvt_pk_bf16_f32 v{vRING+2*tl+1}, v{vACC+4*tl+2}, v{vACC+4*tl+3}")
for h in range(2):
    a(f"v_mfma_f32_16x16x16_bf16 {vr(vACC+4*h,4)}, {vr(vRING+2*h,2)}, {vr(vRING+4+2*h,2)}, 0")
for h in range(2):
    a(f"v_mfma_f32_16x16x16_bf16 {vr(vACC+8+4*h,4)}, {vr(vRING+2*h,2)}, {vr(vRING+8,2)}, 0")
for h in range(2): a(f"ds_write_b128 v{vRING+10}, {vr(vACC+4*h,4)} offset:{1024*h}")
for h in range(2): a(f"ds_write_b128 v{vRING+11}, {vr(vACC+8+4*h,4)} offset:{2048+64*h}")
a("s_waitcnt vmcnt(0) lgkmcnt(0)\ns_barrier")
save = list(a.vmq)
a(f"""
s_cmp_lt_u32 s{sW}, 3
s_cbranch_scc1 L_nokvred
s_cmp_eq_u32 s{sW}, 3
s_cbranch_scc1 L_zred
v_lshlrev_b32 v{t+1}, 3, v{L}
s_sub_u32 s{sT1}, s{sW}, 4
s_lshl_b32 s{sT1}, s{sT1}, 9
s_add_u32 s{sT0}, s{sT1}, 98304
v_add_u32 v{t}, s{sT0}, v{t+1}
""")
for w8 in range(8): a(f"ds_read_b64 {vr(vRING+2*w8,2)}, v{t} offset:{4096*w8}")
a(f"""
s_lshl_b32 s{sT2}, s{sJ}, 4
s_add_u32 s{sT2}, s{sT2}, s{sC}
s_lshl_b32 s{sT2}, s{sT2}, 11
s_add_u32 s{sT2}, s{sT2}, s{sT1}
s_add_u32 s{sT2}, s{sT2}, {KVP}
s_waitcnt lgkmcnt(0)
""")
for w8 in (1, 3, 5, 7):
    for q in range(2): a(f"v_add_f32 v{vRING+2*(w8-1)+q}, v{vRING+2*(w8-1)+q}, v{vRING+2*w8+q}")
for w8 in (2, 6):
    for q in range(2): a(f"v_add_f32 v{vRING+2*(w8-2)+q}, v{vRING+2*(w8-2)+q}, v{vRING+2*w8+q}")
for q in range(2): a(f"v_add_f32 v{vRING+q}, v{vRING+q}, v{vRING+8+q}")
a(f"buffer_store_dwordx2 {vr(vRING,2)}, v{t+1}, {srd(S_WS)}, s{sT2} offen sc1", track=False)
a("s_branch L_kvflag")
a.label("L_zred")
a(f"""
v_and_b32 v{t+1}, 31, v{L}
v_lshlrev_b32 v{t+1}, 2, v{t+1}
v_add_u32 v{t}, {98304+2048}, v{t+1}
""")
for w8 in range(8): a(f"ds_read_b32 v{vRING+w8}, v{t} offset:{4096*w8}")
a(f"""
s_lshl_b32 s{sT2}, s{sJ}, 4
s_add_u32 s{sT2}, s{sT2}, s{sC}
s_lshl_b32 s{sT2}, s{sT2}, 7
s_add_u32 s{sT2}, s{sT2}, {ZP}
s_waitcnt lgkmcnt(0)
""")
for w8 in range(1, 8): a(f"v_add_f32 v{vRING}, v{vRING}, v{vRING+w8}")
a(f"buffer_store_dword v{vRING}, v{t+1}, {srd(S_WS)}, s{sT2} offen sc1", track=False)
a.label("L_kvflag")
flag_store(0, sJ, sC)
a.label("L_nokvred")
a.vmq = save
poll(4, sJ, "R", wave=0, barrier=False)
colsum(1, 3, 3)
stamp("kvpub")
frags = []
for s in range(16):
    for tq in range(2):
        frags.append((vL16B, tq*16384 + s*1024, vACC+16+4*tq, vA+4*s, True, s == 0, None))
mfma_loop(frags)
a("s_barrier")
dma_block(0, f"s_lshl_b32 s{sPF}, s{sJJ}, 16\ns_add_u32 s{sPF}, s{sPF}, {RWO}", 8, "dwo")
a(f"v_lshlrev_b32 v{t}, 4, v{G}\nv_add_u32 v{t}, {ZCS}, v{t}")
for tq in range(2): a(f"ds_read_b128 {vr(vE+8+4*tq,4)}, v{t} offset:{64*(4+tq)}")
vXR = vA + 32
a(f"""
v_lshlrev_b32 v{t+1}, 10, v{I}
v_lshl_add_u32 v{t+1}, v{G}, 4, v{t+1}
s_lshl_b32 s{sT1}, s{sMT}, 14
s_add_u32 s{sT1}, s{sT1}, s{sCOL}
s_lshl_b32 s{sT2}, s{sKH}, 6
s_add_u32 s{sT1}, s{sT1}, s{sT2}
""")
a(f"buffer_load_dwordx4 {vr(vXR,4)}, v{t+1}, {srd(S_X)}, s{sT1} offen", tag="xr")
a(f"v_lshlrev_b32 v{t+1}, 4, v{G}")
for it, sp, add in ((0, sPU, 0), (1, sPU, 1), (2, sPH, 0)):
    a(f"s_add_u32 s{sT2}, s{sp}, {add}\ns_lshl_b32 s{sT2}, s{sT2}, 6")
    a(f"buffer_load_dwordx4 {vr(vB1+4*it,4)}, v{t+1}, {srd(S_B1)}, s{sT2} offen", tag="b1")
a("s_waitcnt lgkmcnt(0)")
for tq in range(2):
    for r in range(4): a(f"v_mul_f32 v{vE+20+r}, v{vS1}, v{vE+8+4*tq+r}")
    for r in range(4):
        ac = vACC + 16 + 4*tq + r
        a(f"v_fma_f32 v{ac}, v{ac}, v{vS2}, -v{vE+20+r}")
    b = vACC + 16 + 4*tq
    phi2(b, b+1, vE+20, vE+21); phi2(b+2, b+3, vE+22, vE+23)
    a(f"v_cvt_pk_bf16_f32 v{vKEEP+2*tq}, v{b}, v{b+1}\nv_cvt_pk_bf16_f32 v{vKEEP+2*tq+1}, v{b+2}, v{b+3}")
stamp("qdone")

a(f"""
s_lshl_b32 s{sT2}, s{sJ}, 15
s_and_b32 s{sT1}, s{sW}, 1
s_lshl_b32 s{sT1}, s{sT1}, 10
s_add_u32 s{sT2}, s{sT2}, s{sT1}
s_lshr_b32 s{sT1}, s{sW}, 1
s_lshl_b32 s{sT1}, s{sT1}, 13
s_add_u32 s{sT2}, s{sT2}, s{sT1}
s_add_u32 s{sT2}, s{sT2}, {KVP}
""")
poll(0, sJ, "A")
stamp("syncA")
for c in range(4):
    a(f"buffer_load_dwordx4 {vr(vRING+4*c,4)}, v{vL16}, {srd(S_WS)}, s{sT2} offen offset:{(c%2)*2048} sc1", tag="kvp")
    if c == 1: a(f"s_add_u32 s{sT2}, s{sT2}, 4096")
save = list(a.vmq)
a(f"""
s_cmp_lg_u32 s{sW}, 7
s_cbranch_scc1 L_noz
s_lshl_b32 s{sT2}, s{sJ}, 11
s_add_u32 s{sT2}, s{sT2}, {ZP}
""")
a(f"buffer_load_dwordx4 {vr(vRING+16,4)}, v{vL16}, {srd(S_WS)}, s{sT2} offen sc1", track=False)
a(f"buffer_load_dwordx4 {vr(vRING+20,4)}, v{vL16}, {srd(S_WS)}, s{sT2} offen offset:1024 sc1", track=False)
a("s_waitcnt vmcnt(0)")
for q in range(4): a(f"v_add_f32 v{vRING+16+q}, v{vRING+16+q}, v{vRING+20+q}")
for q in range(4): a(f"v_add_f32_dpp v{vRING+16+q}, v{vRING+16+q}, v{vRING+16+q} row_ror:8 row_mask:0xf bank_mask:0xf")
for swap in ("v_permlane32_swap_b32", "v_permlane16_swap_b32"):
    for q in range(4): a(f"v_mov_b32 v{vRING+20+q}, v{vRING+16+q}")
    for q in range(4): a(f"{swap} v{vRING+16+q}, v{vRING+20+q}")
    for q in range(4): a(f"v_add_f32 v{vRING+16+q}, v{vRING+16+q}, v{vRING+20+q}")
a(f"""
v_cvt_pk_bf16_f32 v{vRING+20}, v{vRING+16}, v{vRING+17}
v_cvt_pk_bf16_f32 v{vRING+21}, v{vRING+18}, v{vRING+19}
v_and_b32 v{t}, 7, v{L}
v_lshlrev_b32 v{t}, 3, v{t}
v_add_u32 v{t}, {ZZ}, v{t}
ds_write_b64 v{t}, {vr(vRING+20,2)}
""")
a.label("L_noz")
a.vmq = save
a(f"s_lshl_b32 s{sT0}, s{sW}, 10\ns_add_u32 s{sT0}, s{sT0}, {KVS}\nv_add_u32 v{t}, s{sT0}, v{vL16}\nv_add_u32 v{t+1}, {KVS}, v{vL16}")
a.wait_vm("kvp")
for q in range(4): a(f"v_add_f32 v{vRING+q}, v{vRING+q}, v{vRING+4+q}\nv_add_f32 v{vRING+8+q}, v{vRING+8+q}, v{vRING+12+q}")
for q in range(4): a(f"v_add_f32 v{vRING+q}, v{vRING+q}, v{vRING+8+q}")
a(f"ds_write_b128 v{t}, {vr(vRING,4)}\ns_waitcnt lgkmcnt(0)\ns_barrier")
for q in range(8): a(f"ds_read_b128 {vr(vRING+4*q,4)}, v{t+1} offset:{1024*q}")
a(f"v_lshlrev_b32 v{t}, 3, v{G}\nv_add_u32 v{t}, {ZZ}, v{t}")
for h in range(2): a(f"ds_read_b64 {vr(vE+12+2*h,2)}, v{t} offset:{32*h}")
a(f"""
s_lshl_b32 s{sT2}, s{sC}, 3
s_add_u32 s{sT2}, s{sT2}, s{sWM}
s_lshl_b32 s{sT2}, s{sT2}, 4
s_add_u32 s{sT2}, s{sT2}, s{sJ}
s_lshl_b32 s{sT2}, s{sT2}, 10
s_add_u32 s{sT2}, s{sT2}, {OFR}
s_waitcnt lgkmcnt(0)
""")
for h in range(2):
    a(f"v_mfma_f32_16x16x16_bf16 {vr(vACC+8+4*h,4)}, {vr(vE+12+2*h,2)}, {vr(vKEEP+2*h,2)}, 0")
for q in range(8): a(f"v_add_f32 v{vRING+q}, v{vRING+q}, v{vRING+8+q}\nv_add_f32 v{vRING+16+q}, v{vRING+16+q}, v{vRING+24+q}")
for q in range(8): a(f"v_add_f32 v{vRING+q}, v{vRING+q}, v{vRING+16+q}")
for h in range(2):
    a(f"v_cvt_pk_bf16_f32 v{vRING+8+2*h}, v{vRING+4*h}, v{vRING+4*h+1}\nv_cvt_pk_bf16_f32 v{vRING+9+2*h}, v{vRING+4*h+2}, v{vRING+4*h+3}")
for h in range(2):
    a(f"v_mfma_f32_16x16x16_bf16 {vr(vACC+4*h,4)}, {vr(vRING+8+2*h,2)}, {vr(vKEEP+2*h,2)}, 0")
for h in range(2):
    a(f"v_add_f32 v{vE+8+h}, 0x358637bd, v{vACC+8+4*h}\nv_rcp_f32 v{vE+8+h}, v{vE+8+h}")
for h in range(2):
    for r in range(4): a(f"v_mul_f32 v{vACC+4*h+r}, v{vACC+4*h+r}, v{vE+8+h}")
    a(f"v_cvt_pk_bf16_f32 v{vE+16+2*h}, v{vACC+4*h}, v{vACC+4*h+1}\nv_cvt_pk_bf16_f32 v{vE+17+2*h}, v{vACC+4*h+2}, v{vACC+4*h+3}")
a(f"buffer_store_dwordx4 {vr(vE+16,4)}, v{vL16}, {srd(S_WS)}, s{sT2} offen sc1")
flag_store(1, sC, sJ)
stamp("opub")
a("s_barrier")
a(f"""
s_lshl_b32 s{sPF2}, s{sW}, 13
s_add_u32 s{sPF2}, s{sPF2}, {24*4096}
s_mul_i32 s{sPF}, s{sJJ}, {RW2S}
s_add_u32 s{sPF}, s{sPF}, s{sPF2}
s_add_u32 s{sPF}, s{sPF}, {RW2}
""")
dma4(sPF2, sPF, tag="dw2y")
a(f"s_cmp_eq_u32 s{sW}, 7\ns_cbranch_scc1 L_now2y\ns_add_u32 s{sPF}, s{sPF}, 4096\ns_add_u32 s{sPF2}, s{sPF2}, 4096")
dma4(sPF2, sPF, track=False)
a.label("L_now2y")
a(f"""
s_lshl_b32 s{sT2}, s{sMT}, 4
s_lshl_b32 s{sT1}, s{sKH}, 3
s_add_u32 s{sT2}, s{sT2}, s{sT1}
s_lshl_b32 s{sT2}, s{sT2}, 10
s_add_u32 s{sT2}, s{sT2}, {OFR}
s_lshl_b32 s{sT1}, s{sKH}, 15
v_add_u32 v{vTMP}, s{sT1}, v{vL16}
s_waitcnt vmcnt(0)
""")
poll(1, sC, "8")
stamp("syncB")
for q in range(8):
    a(f"buffer_load_dwordx4 {vr(vA+4*q,4)}, v{vL16}, {srd(S_WS)}, s{sT2} offen offset:{(q%4)*1024} sc1", tag=f"o{q}")
    if q == 3: a(f"s_add_u32 s{sT2}, s{sT2}, 4096")
frags = []
for q in range(8):
    for tl in range(4):
        frags.append((vTMP, (q*4+tl)*1024, vACC+4*tl, vA+4*q, True, q == 0, f"o{q}" if tl == 0 else None))
mfma_loop(frags)
def exchange(base):
    l0 = a.newlabel("L_ex0"); l1 = a.newlabel("L_ex1")
    a(f"""
    s_lshl_b32 s{sT0}, s{sW}, 11
    s_add_u32 s{sT0}, s{sT0}, {base}
    v_add_u32 v{t}, s{sT0}, v{vL16}
    s_xor_b32 s{sT1}, s{sW}, 4
    s_lshl_b32 s{sT1}, s{sT1}, 11
    s_add_u32 s{sT1}, s{sT1}, {base}
    v_add_u32 v{t+1}, s{sT1}, v{vL16}
    s_nop 4
    s_cmp_eq_u32 s{sKH}, 0
    s_cbranch_scc0 {l0}
    """)
    a(f"ds_write_b128 v{t}, {vr(vACC+8,4)}\nds_write_b128 v{t}, {vr(vACC+12,4)} offset:1024", track=False)
    for q in range(8): a(f"v_mov_b32 v{vACC+16+q}, v{vACC+q}")
    a(f"s_branch {l1}")
    a.label(l0)
    a(f"ds_write_b128 v{t}, {vr(vACC,4)}\nds_write_b128 v{t}, {vr(vACC+4,4)} offset:1024", track=False)
    for q in range(8): a(f"v_mov_b32 v{vACC+16+q}, v{vACC+8+q}")
    a.label(l1)
    a("s_waitcnt lgkmcnt(0)\ns_barrier")
    a(f"ds_read_b128 {vr(vACC,4)}, v{t+1}\nds_read_b128 {vr(vACC+4,4)}, v{t+1} offset:1024\ns_waitcnt lgkmcnt(0)")
    for q in range(8): a(f"v_add_f32 v{vACC+16+q}, v{vACC+16+q}, v{vACC+q}")
exchange(65536)
def add_resid(src, dst):
    for d in range(4):
        x0 = vE + 8 + 2*(d & 1)
        a(f"""
        v_lshlrev_b32 v{x0}, 16, v{src+d}
        v_and_b32 v{x0+1}, 0xffff0000, v{src+d}
        v_add_f32 v{x0}, v{x0}, v{vACC+16+2*d}
        v_add_f32 v{x0+1}, v{x0+1}, v{vACC+17+2*d}
        v_cvt_pk_bf16_f32 v{dst+d}, v{x0}, v{x0+1}
        """)
add_resid(vXR, vKEEP)
a(f"""
s_lshr_b32 s{sT1}, s{sCOL}, 6
s_add_u32 s{sT1}, s{sT1}, s{sKH}
s_lshl_b32 s{sT2}, s{sMT}, 4
s_add_u32 s{sT2}, s{sT2}, s{sT1}
s_lshl_b32 s{sT2}, s{sT2}, 10
s_add_u32 s{sT2}, s{sT2}, {HFR}
""")
a(f"buffer_store_dwordx4 {vr(vKEEP,4)}, v{vL16}, {srd(S_WS)}, s{sT2} offen sc1")
a(f"v_mov_b32 v{vE+8}, 0\nv_mov_b32 v{vE+9}, 0")
for d in range(4):
    a(f"v_dot2c_f32_bf16 v{vE+8}, s{sONES}, v{vKEEP+d}\nv_dot2c_f32_bf16 v{vE+9}, v{vKEEP+d}, v{vKEEP+d}")
greduce(vE+8, vE+9)
a(f"""
v_lshlrev_b32 v{t}, 3, v{I}
s_lshl_b32 s{sT2}, s{sMT}, 11
s_lshl_b32 s{sT1}, s{sT1}, 7
s_add_u32 s{sT2}, s{sT2}, s{sT1}
s_add_u32 s{sT2}, s{sT2}, {HST}
s_mov_b64 s[{sEX}:{sEX+1}], exec
s_mov_b64 exec, 0xffff
""")
a(f"buffer_store_dwordx2 {vr(vE+8,2)}, v{t}, {srd(S_WS)}, s{sT2} offen sc1")
a(f"s_mov_b64 exec, s[{sEX}:{sEX+1}]")
flag_store(2, sC, sJ)
stamp("hpub")
a("s_barrier")
dma_block(0, f"s_mul_i32 s{sPF}, s{sJ}, {96*1024}\ns_add_u32 s{sPF}, s{sPF}, {RW1}", 12, "dw1")
a(f"""
s_lshl_b32 s{sT2}, s{sC}, 3
s_add_u32 s{sT2}, s{sT2}, s{sW}
s_lshl_b32 s{sXO}, s{sT2}, 11
s_add_u32 s{sXO}, s{sXO}, {HST}
s_lshl_b32 s{sT2}, s{sT2}, 14
s_add_u32 s{sT2}, s{sT2}, {HFR}
v_lshlrev_b32 v{vTMP}, 3, v{I}
v_lshl_add_u32 v{vTMP}, v{G}, 9, v{vTMP}
s_waitcnt vmcnt(0)
s_barrier
""")
colsum(1, 7, -1)
poll(2, sC, "8")
stamp("syncC")
for q in range(4): a(f"buffer_load_dwordx2 {vr(vE+16+2*q,2)}, v{vTMP}, {srd(S_WS)}, s{sXO} offen offset:{128*q} sc1", tag="hst")
hl = []
for s in range(16):
    pre = f"s_add_u32 s{sPF}, s{sPF}, 4096\n" if (s % 4 == 0 and s > 0) else ""
    hl.append((pre + f"buffer_load_dwordx4 {vr(vA+4*s,4)}, v{vL16}, {srd(S_WS)}, s{sPF} offen offset:{(s%4)*1024} sc1", f"h{s}"))
a(f"s_mov_b32 s{sPF}, s{sT2}")
for _ in range(PD): txt, tg = hl.pop(0); a(txt, tag=tg)
a(f"v_lshlrev_b32 v{vTMP}, 4, v{G}\nv_add_u32 v{vTMP}, {ZCS}, v{vTMP}")
a.wait_vm("hst")
a(f"""
v_add_f32 v{vS1}, v{vE+16}, v{vE+18}
v_add_f32 v{vS2}, v{vE+17}, v{vE+19}
v_add_f32 v{vE+20}, v{vE+20}, v{vE+22}
v_add_f32 v{vE+21}, v{vE+21}, v{vE+23}
v_add_f32 v{vS1}, v{vS1}, v{vE+20}
v_add_f32 v{vS2}, v{vS2}, v{vE+21}
""")
for aa in range(2): a(f"ds_read_b128 {vr(vE+16+4*aa,4)}, v{vTMP} offset:{64*aa}", tag="cs0")
stats_final()
a(f"s_lshl_b32 s{sXO}, s{sC}, 3\ns_add_u32 s{sXO}, s{sXO}, s{sW}\ns_mul_i32 s{sXO}, s{sXO}, 43")
def epi3(p, csbase):
    def chain(aa, r):
        ac = vACC + 4*(2*p+aa) + r
        bsrc = vB1 + 4*p + 2*aa + (r >> 1)
        x0, x1, x2 = vE+8+3*(r&1), vE+9+3*(r&1), vE+10+3*(r&1)
        cs = csbase + 4*aa + r
        return [f"v_lshlrev_b32 v{x0}, 16, v{bsrc}" if r % 2 == 0 else f"v_and_b32 v{x0}, 0xffff0000, v{bsrc}",
            f"v_fma_f32 v{x0}, -v{vS1}, v{cs}, v{x0}",
            f"v_fma_f32 v{ac}, v{ac}, v{vS2}, v{x0}",
            f"v_mul_f32 v{x1}, 0x3fb8aa3b, v{ac}",
            f"v_min_f32 v{x1}, 0x42200000, v{x1}",
            f"v_exp_f32 v{x1}, v{x1}",
            f"v_add_f32 v{x2}, 2.0, v{x1}",
            f"v_mul_f32 v{x1}, v{x1}, v{x2}",
            f"v_add_f32 v{x2}, 2.0, v{x1}",
            f"v_rcp_f32 v{x2}, v{x2}",
            f"v_mul_f32 v{ac}, v{ac}, v{x1}",
            f"v_mul_f32 v{ac}, v{ac}, v{x2}"]
    out = []
    for aa in range(2):
        for r in (0, 2):
            c0, c1 = chain(aa, r), chain(aa, r+1)
            for x, y in zip(c0, c1): out += [x, y]
    for d in range(4):
        b = vACC + 8*p + 2*d
        out.append(f"v_cvt_pk_bf16_f32 v{vACC+8*p+d}, v{b}, v{b+1}")
    return out
def epi3_store(p):
    sp, add = ((sPU, 0), (sPU, 1), (sPH, 0))[p]
    a(f"s_add_u32 s{sT2}, s{sp}, s{sXO}\ns_add_u32 s{sT2}, s{sT2}, {add}\ns_lshl_b32 s{sT2}, s{sT2}, 10\ns_add_u32 s{sT2}, s{sT2}, {AFR}")
    a(f"buffer_store_dwordx4 {vr(vACC+8*p,4)}, v{vL16}, {srd(S_WS)}, s{sT2} offen sc1")
frags = []
for s in range(16):
    for tl in range(4):
        frags.append((vL16, tl*16384 + s*1024, vACC+4*tl, vA+4*s, True, s == 0, f"h{s}" if tl == 0 else None))
nA = len(frags)
for s in range(16):
    for tl in range(4, 6):
        frags.append((vL16B, (tl-4)*16384 + s*1024, vACC+4*tl, vA+4*s, True, s == 0, None))
e0 = epi3(0, vE+16)
extra = {}
for f in range(nA + 3, len(frags)):
    extra[f] = [e0.pop(0) for _ in range(2) if e0]
mfma_loop(frags, extra, al=hl)
stamp("p3loop")
for p in (1, 2):
    for aa in range(2):
        a(f"ds_read_b128 {vr(vRING+8*(p-1)+4*aa,4)}, v{vTMP} offset:{64*(2*p+aa)}", tag=f"cs{p}")
for e in e0: a(e)
epi3_store(0)
for p in (1, 2):
    a.wait_lg(f"cs{p}")
    for e in epi3(p, vRING+8*(p-1)): a(e)
    epi3_store(p)
flag_store(3, sC, sJ)
stamp("apub")
a("s_barrier")
dma_block(0, f"s_mul_i32 s{sPF}, s{sJJ}, {RW2S}\ns_add_u32 s{sPF}, s{sPF}, {RW2}", 12, "dw2x")
a(f"""
s_mul_i32 s{sT2}, s{sMT}, 43
s_lshl_b32 s{sT2}, s{sT2}, 10
s_add_u32 s{sT2}, s{sT2}, {AFR}
s_add_u32 s{sPF2}, s{sW}, 39
s_lshl_b32 s{sPF2}, s{sPF2}, 12
s_mul_i32 s{sPF}, s{sJJ}, {RW2S}
s_add_u32 s{sPF}, s{sPF}, s{sPF2}
s_add_u32 s{sPF}, s{sPF}, {RW2}
s_lshr_b32 s{sPF2}, s{sW}, 1
s_mul_i32 s{sPF2}, s{sPF2}, 20
s_and_b32 s{sT1}, s{sW}, 1
s_add_u32 s{sPF2}, s{sPF2}, s{sT1}
s_lshl_b32 s{sPF2}, s{sPF2}, 12
s_waitcnt vmcnt(0)
""")
poll(3, sC, "8")
stamp("syncD")
a(f"s_cmp_eq_u32 s{sKH}, 0\ns_cbranch_scc0 L_p4k1")
def p4(kh):
    ks = list(range(20)) + [39, 40] if kh == 0 else list(range(20, 39)) + [41, 42]
    slot = {39: 0, 40: 1, 41: 20, 42: 21}
    n = len(ks)
    cur = 0
    al = []
    for q, k in enumerate(ks):
        pre = ""
        while k*1024 - cur >= 4096:
            step = ((k*1024 - cur) // 4096) * 4096
            pre += f"s_add_u32 s{sT2}, s{sT2}, {step}\n"; cur += step
        al.append((pre + f"buffer_load_dwordx4 {vr(vA+4*q,4)}, v{vL16}, {srd(S_WS)}, s{sT2} offen offset:{k*1024-cur} sc1", f"a{q}"))
    for _ in range(PD): txt, tg = al.pop(0); a(txt, tag=tg)
    def mk(qs, first):
        fr = []
        for q in qs:
            sl = slot.get(ks[q], ks[q])
            for tl in range(4):
                off = sl*4096 + tl*1024
                fr.append(((vL16, vL16B, vL16C)[off >> 16], off & 0xffff, vACC+4*tl, vA+4*q, True, first and q == 0, f"a{q}" if tl == 0 else None))
        return fr
    mfma_loop(mk(range(0, 8), True), al=al)
    a("s_waitcnt lgkmcnt(0)\ns_barrier")
    if kh == 0: dma4(sPF2, sPF, tag="dov")
    mfma_loop(mk(range(8, n-2), False), al=al)
    a("s_waitcnt vmcnt(0) lgkmcnt(0)\ns_barrier")
    mfma_loop(mk(range(n-2, n), False))
vmq_save = list(a.vmq)
p4(0)
a("s_branch L_p4done")
a.label("L_p4k1")
a.vmq = list(vmq_save)
p4(1)
a.label("L_p4done")
a("s_nop 7")
stamp("p4loop")
exchange(8192)
add_resid(vKEEP, vE+12)
a(f"""
v_lshlrev_b32 v{t}, 10, v{I}
v_lshl_add_u32 v{t}, v{G}, 4, v{t}
s_lshl_b32 s{sT1}, s{sMT}, 14
s_add_u32 s{sT1}, s{sT1}, s{sCOL}
s_lshl_b32 s{sT2}, s{sKH}, 6
s_add_u32 s{sT1}, s{sT1}, s{sT2}
""")
a(f"buffer_store_dwordx4 {vr(vE+12,4)}, v{t}, {srd(S_OUT)}, s{sT1} offen")
if STAMPS:
    a("s_waitcnt vmcnt(0)")
    stamp("end")
    a("s_memtime s[96:97]\ns_waitcnt lgkmcnt(0)\ns_sub_u32 s96, s96, s98")
    a(f"""
    s_lshl_b32 s{sT0}, s2, 10
    s_lshl_b32 s{sT1}, s{sW}, 7
    s_add_u32 s{sT0}, s{sT0}, s{sT1}
    s_add_u32 s{sT0}, s{sT0}, {STAMP}
    s_mov_b64 exec, 1
    """)
    a(f"v_mov_b32 v{vE+8}, s100\nbuffer_store_dword v{vE+8}, v{vZERO}, {srd(S_WS)}, s{sT0} offen offset:124\ns_nop 1")
    a(f"v_mov_b32 v{vE+8}, s96\nbuffer_store_dword v{vE+8}, v{vZERO}, {srd(S_WS)}, s{sT0} offen offset:120\ns_nop 1")
    for n in range(nstamp[0]):
        a(f"v_mov_b32 v{vE+8}, s{64+2*n}\nbuffer_store_dword v{vE+8}, v{vZERO}, {srd(S_WS)}, s{sT0} offen offset:{4*n}\ns_nop 1")
a.label("L_end")
a("s_endpgm")
a.raw(f""".section .rodata,"a"
.p2align 6
.amdhsa_kernel {KNAME}
  .amdhsa_next_free_vgpr 256
  .amdhsa_next_free_sgpr 102
  .amdhsa_accum_offset 256
  .amdhsa_group_segment_fixed_size 0
  .amdhsa_kernarg_size 80
  .amdhsa_user_sgpr_count 2
  .amdhsa_user_sgpr_kernarg_segment_ptr 1
  .amdhsa_system_sgpr_workgroup_id_x 1
.end_amdhsa_kernel""")
open(OUTF, "w").write(a.text())
print("stamps:", nstamp[0], stamp_names)
```

```python
import sys
from asmgen import Asm
KNAME = "sequential_preLN__linear_attn_block__dense_activation_mish__prompt_kernel"
STAMPS = "--stamps" in sys.argv
ONLY = [x.split("=")[1].split(",") for x in sys.argv if x.startswith("--only=")]
OUTF = [a for a in sys.argv[1:] if not a.startswith("--")][0]

FLAGS = 0; KVP = 0x40000; ZP = 0xC0000; OFR = 0x200000; HFR = 0x400000; AFR = 0x600000; HST = 0xC00000
RW1 = 0xD00000
RWO = 0xE80000
RW2 = 0xF00000
RW2S = 176*1024
STAMP = 0x1100000
RQ = 0x1200000
ZB = 159744; ZCS = ZB; ZKV = ZB + 1024; ZZ = ZB + 2048; ZFL = ZB + 3072
KVS = 98304
RPS = 131072
S_X, S_WQKV, S_WO, S_W1, S_B1, S_W2, S_OUT, S_DBG, S_WS = 8, 12, 16, 20, 24, 28, 32, 36, 40
sC, sJ, sW = 44, 45, 46
sT0, sT1, sT2, sPF, sPF2, sCOL = 47, 48, 49, 50, 51, 52
sMT, sKH, sMW = 53, 54, 55
sPU = 56; sPOLL = 57; sEX = 58
sSELLO, sSELHI, sONES = 60, 61, 62
sXO, sXR, sROT, sWM, sPH, sJJ = 63, 3, 4, 5, 6, 7
sEP = 59; sEX = 90; sRW = 92
ZEP = ZB + 3200
def srd(b): return f"s[{b}:{b+3}]"
vL16, vRDA, vL16B, vL16C, vRDX, vRDB, vZERO = 1, 2, 3, 4, 5, 6, 7
vRDY = 0
vWA = 8; vGO = 16; vS1, vS2, vTMP = 17, 18, 19
vKEEP = 20; vRING = 24; vACC = 56; vE = 80; vA = 104
vBP = 208; vRAW1 = 216; vRP = 192; vB1 = 192
def vr(b, n): return f"v[{b}:{b+n-1}]"

a = Asm()
PD = 8
NPF = 4
XP1 = int([x.split('=')[1] for x in sys.argv if x.startswith('--xp1=')][0]) if any(x.startswith('--xp1=') for x in sys.argv) else 16
nstamp = [0]; stamp_names = []
def fstamp(n):
    if "--fine" in sys.argv:
        a(f"s_waitcnt lgkmcnt(0)\ns_memrealtime s[{64+2*n}:{65+2*n}]\ns_waitcnt lgkmcnt(0)")
        nstamp[0] = max(nstamp[0], n+1)
def stamp(name=""):
    if not STAMPS: return
    if ONLY and name not in ONLY[0]: return
    n = nstamp[0]; nstamp[0] += 1; stamp_names.append(name)
    if "--fine" in sys.argv: n = {"b1": 5, "end": 10}[name]; nstamp[0] = 11
    assert n < 13
    a(f"s_waitcnt lgkmcnt(0)\ns_memrealtime s[{64+2*n}:{65+2*n}]\ns_waitcnt lgkmcnt(0)")

hdr = open("sequential_preLN__linear_attn_block__dense_activation_mish__prompt.s.ref").read().split("; @launch")[0]
a.raw(hdr + "; @launch grid=(256,1,1) block=(512,1,1) lds=163840")
a.raw(f'.amdgcn_target "amdgcn-amd-amdhsa--gfx950"\n.text\n.globl {KNAME}\n.p2align 8\n.type {KNAME},@function')
a.label(KNAME)
L, I, G, CB, RV, XRD = vE, vE+1, vE+2, vE+3, vE+4, vE+5
t = vE + 6
a("s_cmp_ge_u32 s2, 256\ns_cbranch_scc1 L_end")
if STAMPS: a("s_memrealtime s[100:101]\ns_memtime s[98:99]")
a(f"""
s_load_dwordx4 s[64:67], s[0:1], 0
s_load_dwordx2 s[68:69], s[0:1], 16
s_load_dwordx4 s[72:75], s[0:1], 32
s_load_dwordx4 s[76:79], s[0:1], 48
s_load_dwordx4 s[80:83], s[0:1], 64
s_and_b32 s3, s2, 7
s_lshl_b32 s3, s3, 1
s_lshr_b32 s4, s2, 7
s_add_u32 s{sC}, s3, s4
s_lshr_b32 s{sJ}, s2, 3
s_and_b32 s{sJ}, s{sJ}, 15
v_lshrrev_b32 v{vTMP}, 6, v0
v_and_b32 v{L}, 63, v0
v_readfirstlane_b32 s{sW}, v{vTMP}
s_mov_b32 s{sSELLO}, 0x05040100
s_mov_b32 s{sSELHI}, 0x07060302
s_mov_b32 s{sONES}, 0x3f803f80
v_mov_b32 v{vZERO}, 0
v_lshlrev_b32 v{vL16}, 4, v{L}
v_and_b32 v{I}, 15, v{L}
v_lshrrev_b32 v{G}, 4, v{L}
v_and_b32 v{CB}, 3, v{L}
v_bfe_u32 v{RV}, v{L}, 2, 2
v_lshrrev_b32 v{t+1}, 3, v{I}
v_and_b32 v{t}, 1, v{G}
v_lshl_or_b32 v{t+1}, v{t}, 1, v{t+1}
v_xor_b32 v{t+1}, v{t+1}, v{I}
v_lshl_add_u32 v{t+1}, v{G}, 4, v{t+1}
v_lshlrev_b32 v{vRDA}, 4, v{t+1}
v_add_u32 v{vRDB}, 0x10000, v{vRDA}
v_xor_b32 v{vRDX}, 64, v{vRDA}
v_add_u32 v{vRDY}, 0x10000, v{vRDX}
v_add_u32 v{vL16B}, 0x10000, v{vL16}
v_add_u32 v{vL16C}, 0x20000, v{vL16}
s_xor_b32 s{sRW}, s{sW}, 4
s_and_b32 s{sMW}, s{sW}, 3
s_lshr_b32 s{sKH}, s{sW}, 2
s_lshl_b32 s{sMT}, s{sC}, 3
s_lshr_b32 s{sT0}, s{sJ}, 3
s_lshl_b32 s{sWM}, s{sT0}, 2
s_add_u32 s{sMT}, s{sMT}, s{sWM}
s_add_u32 s{sMT}, s{sMT}, s{sMW}
s_xor_b32 s{sWM}, s{sWM}, s{sW}
s_and_b32 s{sJJ}, s{sJ}, 7
s_lshl_b32 s{sROT}, s{sJJ}, 1
s_lshl_b32 s{sCOL}, s{sJJ}, 7
s_mul_i32 s{sT0}, s{sJ}, 3
s_and_b32 s{sT1}, s{sJ}, 1
s_add_u32 s{sPU}, s{sT0}, s{sT1}
s_xor_b32 s{sT1}, s{sT1}, 1
s_lshl_b32 s{sT1}, s{sT1}, 1
s_add_u32 s{sPH}, s{sT0}, s{sT1}
s_lshl_b32 s{sT0}, s{sJ}, 1
s_add_u32 s{sT0}, s{sT0}, 10
s_cmp_lt_u32 s{sJ}, 10
s_cselect_b32 s{sPU}, s{sPU}, s{sT0}
s_cselect_b32 s{sPH}, s{sPH}, s{sT0}
s_cmp_eq_u32 s{sJ}, 15
s_cselect_b32 s{sPH}, 42, s{sPH}
""")
def mk_srd(b, lo, nbytes):
    a(f"s_mov_b32 s{b}, s{lo}\ns_and_b32 s{b+1}, s{lo+1}, 0xffff\ns_mov_b32 s{b+2}, {nbytes}\ns_mov_b32 s{b+3}, 0x00020000")
def perm(raw, out):
    for d in range(4):
        for p in range(2):
            a(f"v_perm_b32 v{out+4*d+p}, v{raw+4*(2*p+1)+d}, v{raw+4*(2*p)+d}, s{sSELLO}")
            a(f"v_perm_b32 v{out+4*d+2+p}, v{raw+4*(2*p+1)+d}, v{raw+4*(2*p)+d}, s{sSELHI}")

a(f"""
v_sub_u32 v{t}, 0, v{G}
v_and_b32 v{t}, 3, v{t}
v_xor_b32 v{t}, v{t}, v{CB}
v_lshrrev_b32 v{vGO}, 2, v{L}
v_lshlrev_b32 v{vGO}, 10, v{vGO}
v_lshl_add_u32 v{vGO}, v{t}, 4, v{vGO}
s_lshl_b32 s{sXO}, s{sC}, 3
s_add_u32 s{sXO}, s{sXO}, s{sWM}
s_lshl_b32 s{sXO}, s{sXO}, 14
s_lshl_b32 s{sXR}, s{sW}, 14
s_add_u32 s{sXR}, s{sXR}, 24576
v_lshrrev_b32 v{t}, 2, v{I}
v_sub_u32 v{t}, 0, v{t}
v_and_b32 v{t}, 3, v{t}
v_xor_b32 v{t}, v{t}, v{G}
v_lshlrev_b32 v{t}, 4, v{t}
v_lshl_add_u32 v{t}, v{I}, 6, v{t}
v_add_u32 v{XRD}, s{sXR}, v{t}
v_lshrrev_b32 v{vWA}, 1, v{G}
v_and_b32 v{vWA+1}, 1, v{G}
v_lshlrev_b32 v{vWA+2}, 2, v{RV}
v_lshl_add_u32 v{vWA+2}, v{vWA}, 4, v{vWA+2}
v_lshrrev_b32 v{vWA+3}, 1, v{RV}
v_lshl_add_u32 v{vWA+3}, v{vWA}, 1, v{vWA+3}
v_and_b32 v{vWA+4}, 1, v{RV}
v_mov_b32 v{t}, {ZFL}
ds_write_b32 v{t}, v{vZERO}
ds_write_b32 v{t}, v{vZERO} offset:4
ds_write_b32 v{t}, v{vZERO} offset:8
ds_write_b32 v{t}, v{vZERO} offset:12
s_waitcnt lgkmcnt(0)
""")
def xdma(s_, track=True):
    a(f"s_add_u32 m0, s{sXR}, {s_*1024}\ns_add_u32 s{sPF2}, s{sROT}, {s_}\ns_and_b32 s{sPF2}, s{sPF2}, 15\ns_lshl_b32 s{sPF2}, s{sPF2}, 6\ns_add_u32 s{sPF2}, s{sPF2}, s{sXO}")
    a(f"buffer_load_dwordx4 v{vGO}, {srd(S_X)}, s{sPF2} offen lds", tag=f"xd{s_}", track=track)
mk_srd(S_WQKV, 66, 512*1536*2)
mk_srd(S_WS, 82, 0x10000000)
mk_srd(S_X, 64, 2048*512*2)
mk_srd(S_WO, 68, 512*512*2)
mk_srd(S_W1, 72, 512*1376*2)
mk_srd(S_B1, 74, 1376*2)
mk_srd(S_W2, 76, 1376*512*2)
mk_srd(S_OUT, 78, 2048*512*2)
mk_srd(S_DBG, 80, 256)
def raw4(srdb, go, stride):
    for r in range(4):
        a(f"buffer_load_dwordx4 {vr(vRP+4*r,4)}, v{go}, {srd(srdb)}, s{sPF} offen", track=False)
        if r < 3: a(f"s_add_u32 s{sPF}, s{sPF}, {stride}")
g = t
fstamp(7)
a(f"""
s_cmp_lt_u32 s{sRW}, 4
s_cbranch_scc1 L_rx
s_cmp_eq_u32 s{sRW}, 7
s_cbranch_scc1 L_r7
s_cmp_eq_u32 s{sRW}, 6
s_cbranch_scc1 L_rx
; ---- waves 4,5: wqkv unit. sec = (j odd) ? 2 : (w-4) ; odd j wave 5: no role
s_and_b32 s{sT0}, s{sJ}, 1
s_sub_u32 s{sT1}, s{sRW}, 4
s_cmp_eq_u32 s{sT0}, 1
s_cselect_b32 s{sT2}, 2, s{sT1}             ; sec
s_add_u32 s{sT0}, s{sT2}, 1
s_cmp_eq_u32 s{sT2}, 2
s_cselect_b32 s{sT0}, 0, s{sT0}
s_lshl_b32 s{sT0}, s{sT0}, 10
s_lshr_b32 s{sT1}, s{sJ}, 1
s_lshl_b32 s{sT1}, s{sT1}, 7
s_add_u32 s{sT0}, s{sT0}, s{sT1}
s_mul_i32 s{sPF}, s{sC}, {32*3072}
s_add_u32 s{sPF}, s{sPF}, s{sT0}
s_mov_b32 s{sT0}, 3072
v_mul_lo_u32 v{g}, v{vWA+2}, s{sT0}
v_lshl_add_u32 v{g}, v{vWA+1}, 6, v{g}
v_lshl_add_u32 v{g}, v{CB}, 4, v{g}
""")
raw4(S_WQKV, g, 3072)
fstamp(8)
a("s_branch L_rx")
a.label("L_r7")
if "--nopf" not in sys.argv:
    a(f"""
    s_getpc_b64 s[{sT0+1}:{sT0+2}]
    L_pfpc:
    v_lshlrev_b32 v{t}, 7, v{L}
    v_mov_b32 v{t+3}, s{sT2}
    v_add_co_u32 v{t+2}, vcc, s{sT1}, v{t}
    v_addc_co_u32 v{t+3}, vcc, 0, v{t+3}, vcc
    s_mov_b32 s{sT0}, L_end-L_pfpc
    s_mov_b64 s[{sEX}:{sEX+1}], exec
    """)
    for q in range(NPF):
        a(f"v_cmp_gt_u32 vcc, s{sT0}, v{t}\ns_and_b64 exec, exec, vcc\ns_cbranch_execz L_pfx")
        a(f"global_load_dword v{vKEEP+(q&3)}, v[{t+2}:{t+3}], off", track=False)
        if q < NPF-1: a(f"v_add_co_u32 v{t+2}, vcc, 0x2000, v{t+2}\nv_addc_co_u32 v{t+3}, vcc, 0, v{t+3}, vcc\nv_add_u32 v{t}, 0x2000, v{t}")
    a(f"L_pfx:\ns_mov_b64 exec, s[{sEX}:{sEX+1}]")
a(f"""
s_cmp_lg_u32 s2, 0
s_cbranch_scc1 L_rx
s_memrealtime s[{sT0+1}:{sT0+2}]
s_waitcnt lgkmcnt(0)
s_or_b32 s{sT1}, s{sT1}, 1
v_mov_b32 v{t+6}, s{sT1}
s_mov_b64 s[{sEX}:{sEX+1}], exec
s_mov_b64 exec, 1
""")
a(f"buffer_store_dword v{t+6}, v{vZERO}, {srd(S_DBG)}, 0 offen sc1", track=False)
a(f"s_mov_b64 exec, s[{sEX}:{sEX+1}]\ns_branch L_rx")
a.label("L_rx")
for s in range(XP1): xdma(s, track=False)
fstamp(9)
def get_epoch():
    lp = a.newlabel("L_ep"); lx = a.newlabel("L_epx")
    a(f"s_mov_b32 s{sPOLL}, 0")
    a.label(lp)
    a(f"buffer_load_dword v{t+2}, v{vZERO}, {srd(S_DBG)}, 0 offen sc1", track=False)
    a(f"""
    s_add_u32 s{sPOLL}, s{sPOLL}, 1
    s_waitcnt vmcnt(0)
    v_readfirstlane_b32 s{sEP}, v{t+2}
    s_cmp_gt_u32 s{sPOLL}, 200000
    s_cbranch_scc1 {lx}
    s_cmp_eq_u32 s{sEP}, 0
    s_cbranch_scc1 {lp}
    """)
    a.label(lx)
def flag_store(k, grp, mem, wreg=None):
    wreg = sW if wreg is None else wreg
    a(f"""
    s_lshl_b32 s{sT0}, s{grp}, 4
    s_add_u32 s{sT0}, s{sT0}, s{mem}
    s_add_u32 s{sT0}, s{sT0}, {k*256}
    s_lshl_b32 s{sT0}, s{sT0}, 7
    s_lshl_b32 s{sT1}, s{wreg}, 2
    s_add_u32 s{sT0}, s{sT0}, s{sT1}
    v_mov_b32 v{vTMP}, s{sEP}
    s_mov_b64 s[{sEX}:{sEX+1}], exec
    s_mov_b64 exec, 1
    s_waitcnt vmcnt(0)
    """)
    a(f"buffer_store_dword v{vTMP}, v{vZERO}, {srd(S_WS)}, s{sT0} offen sc1", track=False)
    a(f"s_mov_b64 exec, s[{sEX}:{sEX+1}]")
def mfma_loop(frags, extra=None, depth=6, al=None):
    n = len(frags)
    def rd(f):
        ad, off = frags[f][0], frags[f][1]
        a(f"ds_read_b128 {vr(vRING+4*(f%8),4)}, v{ad} offset:{off}", tag=f"bf{f}")
    a("s_setprio 2")
    for f in range(min(depth, n)): rd(f)
    for f in range(n):
        ad, off, acc, areg, tr, first, at = frags[f]
        if at is not None: a.wait_vm(at)
        a.wait_lg(f"bf{f}")
        w = vr(vRING+4*(f%8),4); x = vr(areg,4); c = "0" if first else vr(acc,4)
        if tr: a(f"v_mfma_f32_16x16x32_bf16 {vr(acc,4)}, {w}, {x}, {c}")
        else:  a(f"v_mfma_f32_16x16x32_bf16 {vr(acc,4)}, {x}, {w}, {c}")
        if al and at is not None:
            txt, tg = al.pop(0); a(txt, tag=tg)
        if extra and f in extra:
            for e in extra[f]: a(e)
        if f + depth < n: rd(f + depth)
    a("s_setprio 0")
def greduce(r1, r2):
    for swap in ("v_permlane32_swap_b32", "v_permlane16_swap_b32"):
        a(f"""
        v_mov_b32 v{t}, v{r1}
        v_mov_b32 v{t+1}, v{r2}
        {swap} v{r1}, v{t}
        {swap} v{r2}, v{t+1}
        v_add_f32 v{r1}, v{r1}, v{t}
        v_add_f32 v{r2}, v{r2}, v{t+1}
        """)
def stats_final():
    greduce(vS1, vS2)
    a(f"""
    v_mul_f32 v{vS1}, 0x3b000000, v{vS1}
    v_mul_f32 v{vS2}, 0x3b000000, v{vS2}
    v_fma_f32 v{vS2}, -v{vS1}, v{vS1}, v{vS2}
    v_max_f32 v{vS2}, 0, v{vS2}
    v_add_f32 v{vS2}, 0x3727c5ac, v{vS2}
    v_rsq_f32 v{vS2}, v{vS2}
    v_mul_f32 v{vS1}, v{vS1}, v{vS2}
    """)

def dma4(lds_expr_sgpr, src_sgpr, n=4, tag="dma", track=True):
    a(f"s_mov_b32 m0, s{lds_expr_sgpr}\ns_nop 0")
    for q in range(n):
        a(f"buffer_load_dwordx4 v{vL16}, {srd(S_WS)}, s{src_sgpr} offen offset:{1024*q} sc1 lds", tag=tag, track=track)
def dma_block(lds0, src_base_txt, per_wave_kb, tag="dma"):
    a(f"s_mul_i32 s{sPF2}, s{sW}, {per_wave_kb*1024}\n{src_base_txt}\ns_add_u32 s{sPF}, s{sPF}, s{sPF2}\ns_add_u32 s{sPF2}, s{sPF2}, {lds0}")
    for g in range(per_wave_kb // 4):
        dma4(sPF2, sPF, tag=tag)
        if g < per_wave_kb//4 - 1: a(f"s_add_u32 s{sPF}, s{sPF}, 4096\ns_add_u32 s{sPF2}, s{sPF2}, 4096")

def poll(k, grp, mode, with_dbg=False, wave=0, barrier=True):
    lab = a.newlabel("L_pskip"); lp = a.newlabel("L_poll")
    save = list(a.vmq)
    a(f"s_cmp_lg_u32 s{sW}, {wave}\ns_cbranch_scc1 {lab}")
    if mode == "R":
        a(f"""
        v_lshrrev_b32 v{t}, 1, v{L}
        v_and_b32 v{t+1}, 15, v{t}
        v_lshrrev_b32 v{t}, 4, v{t}
        v_lshlrev_b32 v{t}, 3, v{t}
        v_xor_b32 v{t}, s{sJ}, v{t}
        v_lshl_add_u32 v{t}, v{t}, 4, v{t+1}
        v_lshlrev_b32 v{t}, 7, v{t}
        v_and_b32 v{t+1}, 1, v{L}
        v_lshl_add_u32 v{t}, v{t+1}, 3, v{t}
        s_mov_b32 s{sT0}, {k*16*2048}
        s_or_b32 s{sT1}, s{sJ}, 1
        s_lshl_b32 s{sT1}, s{sT1}, 11
        v_lshlrev_b32 v{t+1}, 7, v{I}
        v_add_u32 v{t+1}, s{sT1}, v{t+1}
        """)
    elif mode == "KV":
        a(f"""
        v_lshlrev_b32 v{t}, 7, v{I}
        v_add_u32 v{t}, 16, v{t}
        v_and_b32 v{t+1}, 1, v{G}
        v_lshl_add_u32 v{t}, v{t+1}, 11, v{t}
        s_and_b32 s{sT0}, s{sJ}, 14
        s_add_u32 s{sT0}, s{sT0}, {k*16}
        s_lshl_b32 s{sT0}, s{sT0}, 11
        v_mov_b32 v{t+5}, -1
        v_subrev_u32 v{t+6}, 1, v{t+1}
        """)
    else:
        a(f"""
        v_lshrrev_b32 v{t}, 2, v{L}
        v_lshlrev_b32 v{t}, 7, v{t}
        v_lshl_add_u32 v{t}, v{CB}, 3, v{t}
        s_add_u32 s{sT0}, s{grp}, {k*16}
        s_lshl_b32 s{sT0}, s{sT0}, 11
        """)
    a(f"s_mov_b32 s{sPOLL}, 0")
    if mode == "A":
        a(f"v_cmp_gt_u32 vcc, 2, v{CB}\nv_cndmask_b32 v{t+5}, -1, 0, vcc\nv_cmp_eq_u32 vcc, 0, v{CB}\nv_cndmask_b32 v{t+6}, -1, 0, vcc")
    a.label(lp)
    a(f"buffer_load_dwordx2 {vr(t+2,2)}, v{t}, {srd(S_WS)}, s{sT0} offen sc1", track=False)
    if with_dbg: a(f"buffer_load_dword v{t+4}, v{t+1}, {srd(S_DBG)}, 0 offen sc1", track=False)
    if mode == "R": a(f"buffer_load_dword v{t+4}, v{t+1}, {srd(S_WS)}, s{sT0} offen offset:16 sc1", track=False)
    a(f"s_add_u32 s{sPOLL}, s{sPOLL}, 1\ns_waitcnt vmcnt(0)")
    a(f"v_xor_b32 v{t+2}, s{sEP}, v{t+2}\nv_xor_b32 v{t+3}, s{sEP}, v{t+3}")
    if mode in ("A", "KV"): a(f"v_and_b32 v{t+2}, v{t+2}, v{t+5}\nv_and_b32 v{t+3}, v{t+3}, v{t+6}")
    a(f"v_or_b32 v{t+2}, v{t+2}, v{t+3}")
    if mode == "R": a(f"v_xor_b32 v{t+4}, s{sEP}, v{t+4}\nv_or_b32 v{t+2}, v{t+2}, v{t+4}")
    a(f"""
    v_cmp_eq_u32 vcc, 0, v{t+2}
    s_cmp_gt_u32 s{sPOLL}, 200000
    s_cbranch_scc1 {lab}
    s_cmp_eq_u64 vcc, exec
    s_cbranch_scc0 {lp}
    """)
    a.label(lab)
    a.vmq = save
    if barrier: a("s_barrier")

def assemble(nat, skip_hi_wave=None, base=0, wr=None):
    wr = sRW if wr is None else wr
    a(f"s_lshl_b32 s{sT0}, s{wr}, 12\ns_add_u32 s{sT0}, s{sT0}, {base}\nv_lshlrev_b32 v{t}, 8, v{vWA+3}\nv_lshl_add_u32 v{t}, v{vWA+4}, 3, v{t}\nv_add_u32 v{t}, s{sT0}, v{t}\nv_add_u32 v{t+1}, s{sT0}, v{vL16}")
    if nat:
        a(f"""
        v_lshl_add_u32 v{t}, v{vWA+1}, 11, v{t}
        v_lshrrev_b32 v{t+2}, 1, v{CB}
        v_lshl_add_u32 v{t}, v{t+2}, 10, v{t}
        v_and_b32 v{t+2}, 1, v{CB}
        v_lshl_add_u32 v{t}, v{t+2}, 7, v{t}
        """)
    else:
        a(f"""
        s_cmp_eq_u32 s{wr}, 1
        s_cselect_b32 s{sT0}, 0, 1
        v_mul_lo_u32 v{t+2}, v{vWA+1}, s{sT0}
        v_lshl_add_u32 v{t}, v{t+2}, 11, v{t}
        v_lshl_add_u32 v{t}, v{CB}, 6, v{t}
        """)
    perm(vRP, vRING)
    for u in range(8):
        off = 16*u if nat else (u>>2)*1024 + (u&3)*16
        a(f"ds_write_b64 v{t}, {vr(vRING+2*u,2)} offset:{off}")
    a("s_waitcnt lgkmcnt(0)")
    for q in range(4): a(f"ds_read_b128 {vr(vRING+16+4*q,4)}, v{t+1} offset:{1024*q}")
    a("s_waitcnt lgkmcnt(0)")
    lf = a.newlabel("L_asf")
    for q in range(4):
        if q == 2 and skip_hi_wave is not None: a(f"s_cmp_eq_u32 s{wr}, {skip_hi_wave}\ns_cbranch_scc1 {lf}")
        a(f"buffer_store_dwordx4 {vr(vRING+16+4*q,4)}, v{vL16}, {srd(S_WS)}, s{sT2} offen sc1", track=False)
        if q < 3: a(f"s_add_u32 s{sT2}, s{sT2}, s{sPF2}")
    a.label(lf)

a(f"""
s_cmp_lt_u32 s{sRW}, 4
s_cbranch_scc1 L_apoll
s_cmp_ge_u32 s{sRW}, 6
s_cbranch_scc1 L_apoll
; waves 4,5
s_and_b32 s{sT0}, s{sJ}, 1
s_sub_u32 s{sT1}, s{sRW}, 4
s_add_u32 s{sT2}, s{sT0}, s{sT1}
s_cmp_eq_u32 s{sT2}, 2
s_cbranch_scc1 L_a45x
s_cmp_eq_u32 s{sT0}, 1
s_cselect_b32 s{sT2}, 2, s{sT1}
s_lshl_b32 s{sT2}, s{sT2}, 16
s_lshr_b32 s{sT1}, s{sJ}, 1
s_mul_i32 s{sT1}, s{sT1}, {192*1024}
s_add_u32 s{sT2}, s{sT2}, s{sT1}
s_lshl_b32 s{sT1}, s{sC}, 10
s_add_u32 s{sT2}, s{sT2}, s{sT1}
s_add_u32 s{sT2}, s{sT2}, {RQ}
s_mov_b32 s{sPF2}, 16384
s_waitcnt vmcnt({XP1})
""")
fstamp(0)
assemble(True)
fstamp(1)
get_epoch()
fstamp(3)
flag_store(4, sJ, sC, sRW)
fstamp(4)
a.label("L_a45x")
a.label("L_apoll")
a.label("L_b0")
a("s_barrier")
def xrd(lo, hi):
    for s_ in range(lo, hi): a(f"ds_read_b128 {vr(vA+4*s_,4)}, v{XRD} offset:{s_*1024}")
    a("s_waitcnt lgkmcnt(0)")
for s in range(XP1, 16): xdma(s, track=False)
a("s_waitcnt vmcnt(0)")
a(f"s_cmp_ge_u32 s{sW}, 4\ns_cbranch_scc1 L_n03")
a.label("L_r03")
a(f"""
s_cmp_ge_u32 s{sW}, 2
s_cbranch_scc1 L_r23
s_mov_b32 s{sT0}, 2752
v_mul_lo_u32 v{g}, v{vWA+2}, s{sT0}
s_xor_b32 s{sT0}, s{sW}, 1
v_mul_lo_u32 v{g+1}, v{vWA+1}, s{sT0}
v_lshl_add_u32 v{g}, v{g+1}, 6, v{g}
v_lshl_add_u32 v{g}, v{CB}, 4, v{g}
s_cmp_eq_u32 s{sW}, 0
s_cselect_b32 s{sT0}, s{sPU}, s{sPH}
s_lshl_b32 s{sT0}, s{sT0}, 6
s_mul_i32 s{sPF}, s{sC}, {32*2752}
s_add_u32 s{sPF}, s{sPF}, s{sT0}
""")
raw4(S_W1, g, 2752)
a("s_branch L_r03e")
a.label("L_r23")
a(f"""
s_lshr_b32 s{sT0}, s{sJ}, 3
s_add_u32 s{sT1}, s{sT0}, s{sW}
s_cmp_eq_u32 s{sT1}, 2
s_cbranch_scc0 L_rw2
v_lshlrev_b32 v{g}, 2, v{vWA+3}
v_lshl_add_u32 v{g}, v{vWA+4}, 4, v{g}
v_lshlrev_b32 v{g}, 10, v{g}
v_lshl_add_u32 v{g}, v{vWA+1}, 6, v{g}
v_lshl_add_u32 v{g}, v{CB}, 4, v{g}
s_lshl_b32 s{sPF}, s{sC}, 15
s_add_u32 s{sPF}, s{sPF}, s{sCOL}
""")
raw4(S_WO, g, 1024)
a("s_branch L_r03e")
a.label("L_rw2")
a(f"""
s_sub_u32 s{sT1}, s{sW}, 1
s_mul_i32 s{sT1}, s{sT1}, s{sT0}
s_lshl_b32 s{sT1}, s{sT1}, 4
s_add_u32 s{sT1}, s{sT1}, s{sC}
v_lshlrev_b32 v{g}, 10, v{vWA+2}
v_lshl_add_u32 v{g}, v{vWA+1}, 6, v{g}
v_lshl_add_u32 v{g}, v{CB}, 4, v{g}
s_lshl_b32 s{sPF}, s{sT1}, 15
s_add_u32 s{sPF}, s{sPF}, s{sCOL}
""")
raw4(S_W2, g, 1024)
a.label("L_r03e")
a.label("L_n03")
xrd(0, 16)
a(f"s_lshl_b32 s{sXR}, s{sW}, 12\ns_add_u32 s{sXR}, s{sXR}, 98304")
a(f"v_mov_b32 v{vS1}, 0\nv_mov_b32 v{vS2}, 0\nv_mov_b32 v{vE+8}, 0\nv_mov_b32 v{vE+9}, 0")
def dots(lo, hi):
    for d in range(lo, hi, 2):
        a(f"v_dot2c_f32_bf16 v{vS1}, s{sONES}, v{vA+d}\nv_dot2c_f32_bf16 v{vS2}, v{vA+d}, v{vA+d}")
        a(f"v_dot2c_f32_bf16 v{vE+8}, s{sONES}, v{vA+d+1}\nv_dot2c_f32_bf16 v{vE+9}, v{vA+d+1}, v{vA+d+1}")
dots(0, 64)
a(f"v_add_f32 v{vS1}, v{vS1}, v{vE+8}\nv_add_f32 v{vS2}, v{vS2}, v{vE+9}")
stats_final()
a(f"v_lshlrev_b32 v{t}, 4, v{G}")
for r in range(4):
    a(f"ds_bpermute_b32 v{vBP+r}, v{t}, v{vS2} offset:{4*r}")
    a(f"ds_bpermute_b32 v{vBP+4+r}, v{t}, v{vS1} offset:{4*r}")
a("s_waitcnt lgkmcnt(0)")
a(f"s_cmp_lg_u32 s{sRW}, 6\ns_cbranch_scc1 L_b1")
fstamp(2)
get_epoch()
fstamp(3)
a(f"v_mov_b32 v{t}, {ZEP}\nv_mov_b32 v{t+1}, s{sEP}\nds_write_b32 v{t}, v{t+1}\ns_waitcnt lgkmcnt(0)")
poll(4, sJ, "KV", wave=2, barrier=False)
fstamp(4)
a.label("L_b1")
a.vmq = []
a("s_barrier")
stamp("b1")
a(f"v_mov_b32 v{t}, {ZEP}\nds_read_b32 v{t+1}, v{t}\ns_waitcnt lgkmcnt(0)\nv_readfirstlane_b32 s{sEP}, v{t+1}")
def wq_dma(lds_tile_sgpr_txt, sec_tile_txt, q0_txt, ngroups):
    a(lds_tile_sgpr_txt + "\n" + sec_tile_txt + "\n" + q0_txt)
    for gi in range(ngroups):
        a(f"""
        s_add_u32 s{sPF}, s{sT2}, {2*gi}
        s_lshl_b32 s{sPF2}, s{sPF}, 10
        s_add_u32 m0, s{sPF2}, s{sT0}
        s_add_u32 s{sPF}, s{sPF}, s{sROT}
        s_and_b32 s{sPF}, s{sPF}, 15
        s_lshl_b32 s{sPF}, s{sPF}, 10
        s_add_u32 s{sPF}, s{sPF}, s{sT1}
        """)
        for q in range(2):
            a(f"buffer_load_dwordx4 v{vL16}, {srd(S_WS)}, s{sPF} offen offset:{1024*q} sc1 lds", tag="dwq")
srcbase = f"s_lshr_b32 s{sT1}, s{sJ}, 1\ns_mul_i32 s{sT1}, s{sT1}, {192*1024}\ns_and_b32 s{sPF}, s{sJ}, 1\ns_lshl_b32 s{sPF}, s{sPF}, 15\ns_add_u32 s{sT1}, s{sT1}, s{sPF}\ns_add_u32 s{sT1}, s{sT1}, {RQ}"
wq_dma(f"s_lshr_b32 s{sT0}, s{sW}, 1\ns_lshl_b32 s{sT0}, s{sT0}, 14",
       srcbase + f"\ns_lshr_b32 s{sPF}, s{sW}, 2\ns_lshl_b32 s{sPF}, s{sPF}, 16\ns_add_u32 s{sT1}, s{sT1}, s{sPF}\ns_lshr_b32 s{sPF}, s{sW}, 1\ns_and_b32 s{sPF}, s{sPF}, 1\ns_lshl_b32 s{sPF}, s{sPF}, 14\ns_add_u32 s{sT1}, s{sT1}, s{sPF}",
       f"s_and_b32 s{sT2}, s{sW}, 1\ns_lshl_b32 s{sT2}, s{sT2}, 3", 4)
wq_dma(f"s_lshr_b32 s{sT0}, s{sW}, 2\ns_lshl_b32 s{sT0}, s{sT0}, 14\ns_add_u32 s{sT0}, s{sT0}, 65536",
       srcbase + f"\ns_add_u32 s{sT1}, s{sT1}, {2*65536}\ns_lshr_b32 s{sPF}, s{sW}, 2\ns_lshl_b32 s{sPF}, s{sPF}, 14\ns_add_u32 s{sT1}, s{sT1}, s{sPF}",
       f"s_and_b32 s{sT2}, s{sW}, 3\ns_lshl_b32 s{sT2}, s{sT2}, 2", 2)
a("s_waitcnt vmcnt(4)\ns_barrier")
stamp("kvstaged")

def colsum(w_lo, w_hi, tile_add=0, flag=False):
    lab = a.newlabel("L_nocs")
    if w_lo > 0: a(f"s_cmp_lt_u32 s{sW}, {w_lo}\ns_cbranch_scc1 {lab}")
    if w_hi < 8: a(f"s_cmp_ge_u32 s{sW}, {w_hi}\ns_cbranch_scc1 {lab}")
    a(f"s_add_u32 s{sT1}, s{sW}, {tile_add & 0xffffffff}")
    a(f"s_lshl_b32 s{sT0}, s{sT1}, 14\nv_add_u32 v{t}, s{sT0}, v{vL16}")
    for q in range(4): a(f"v_mov_b32 v{t+2+q}, s{sONES}")
    for s in range(8): a(f"ds_read_b128 {vr(vRING+4*s,4)}, v{t} offset:{s*1024}", tag=f"cs{s}")
    acc = t + 6
    for s in range(16):
        a.wait_lg(f"cs{s}")
        a(f"v_mfma_f32_16x16x32_bf16 {vr(acc,4)}, {vr(t+2,4)}, {vr(vRING+4*(s%8),4)}, {'0' if s==0 else vr(acc,4)}")
        if s + 8 < 16: a(f"ds_read_b128 {vr(vRING+4*(s%8),4)}, v{t} offset:{(s+8)*1024}", tag=f"cs{s+8}")
    a(f"""
    v_lshlrev_b32 v{t}, 2, v{I}
    s_lshl_b32 s{sT0}, s{sT1}, 6
    s_add_u32 s{sT0}, s{sT0}, {ZCS}
    v_add_u32 v{t}, s{sT0}, v{t}
    ds_write_b32 v{t}, v{acc}
    s_waitcnt lgkmcnt(0)
    """)
    if flag:
        a(f"s_lshl_b32 s{sT0}, s{sT1}, 2\ns_add_u32 s{sT0}, s{sT0}, {ZFL}\nv_mov_b32 v{t}, s{sT0}\nv_mov_b32 v{t+1}, 1\nds_write_b32 v{t}, v{t+1}\ns_waitcnt lgkmcnt(0)")
    a.label(lab)

colsum(4, 8, -4, flag=True)
frags = []
for s_ in range(16):
    for t_ in range(4):
        frags.append((vL16, t_*16384 + s_*1024, vACC+4*t_, vA+4*s_, False, s_ == 0, None))
mfma_loop(frags)
stamp("kvloop")
save = list(a.vmq)
a(f"s_cmp_ge_u32 s{sW}, 4\ns_cbranch_scc1 L_norf")
a.label("L_a03")
a(f"""
s_lshr_b32 s{sT0}, s{sJ}, 3
s_mul_i32 s{sT2}, s{sJ}, {96*1024}
s_lshl_b32 s{sT1}, s{sC}, 10
s_add_u32 s{sT2}, s{sT2}, s{sT1}
s_lshl_b32 s{sT1}, s{sW}, 16
s_add_u32 s{sT2}, s{sT2}, s{sT1}
s_add_u32 s{sT2}, s{sT2}, {RW1}
s_mov_b32 s{sPF2}, 16384
s_cmp_lt_u32 s{sW}, 2
s_cbranch_scc1 L_rpdst
s_mov_b32 s{sPF2}, 1024
s_add_u32 s{sT1}, s{sT0}, s{sW}
s_lshl_b32 s{sT2}, s{sJJ}, 16
s_lshl_b32 s{sPF}, s{sC}, 12
s_add_u32 s{sT2}, s{sT2}, s{sPF}
s_add_u32 s{sT2}, s{sT2}, {RWO}
s_cmp_eq_u32 s{sT1}, 2
s_cbranch_scc1 L_rpdst
s_sub_u32 s{sT1}, s{sW}, 1
s_mul_i32 s{sT1}, s{sT1}, s{sT0}
s_lshl_b32 s{sT1}, s{sT1}, 4
s_add_u32 s{sT1}, s{sT1}, s{sC}
s_min_u32 s{sT1}, s{sT1}, 43
s_lshl_b32 s{sT1}, s{sT1}, 12
s_mul_i32 s{sT2}, s{sJJ}, {RW2S}
s_add_u32 s{sT2}, s{sT2}, s{sT1}
s_add_u32 s{sT2}, s{sT2}, {RW2}
L_rpdst:
s_waitcnt vmcnt(0)
""")
assemble(False, skip_hi_wave=1, base=131072, wr=sW)
flag_store(4, sJ, sC)
a.label("L_norf")
a.vmq = save
a(f"v_lshlrev_b32 v{t}, 4, v{G}\nv_lshlrev_b32 v{t+1}, 2, v{I}\nv_add_u32 v{t+1}, {ZCS}, v{t+1}")
a(f"""
v_mov_b32 v{vE+20}, {ZFL}
s_mov_b32 s{sPOLL}, 0
L_csw:
ds_read_b128 {vr(vE+16,4)}, v{vE+20}
s_add_u32 s{sPOLL}, s{sPOLL}, 1
s_cmp_gt_u32 s{sPOLL}, 100000
s_cbranch_scc1 L_cswx
s_waitcnt lgkmcnt(0)
v_and_b32 v{vE+16}, v{vE+16}, v{vE+17}
v_and_b32 v{vE+18}, v{vE+18}, v{vE+19}
v_and_b32 v{vE+16}, v{vE+16}, v{vE+18}
v_cmp_ne_u32 vcc, 0, v{vE+16}
s_cbranch_vccz L_csw
L_cswx:
s_waitcnt lgkmcnt(0)
""")
def phi2(r0, r1, t0, t1):
    a(f"""
    v_min_f32 v{t0}, 0, v{r0}
    v_min_f32 v{t1}, 0, v{r1}
    v_mul_f32 v{t0}, 0x3fb8aa3b, v{t0}
    v_mul_f32 v{t1}, 0x3fb8aa3b, v{t1}
    v_exp_f32 v{t0}, v{t0}
    v_exp_f32 v{t1}, v{t1}
    v_max_f32 v{r0}, 0, v{r0}
    v_max_f32 v{r1}, 0, v{r1}
    v_add_f32 v{r0}, 0x358637bd, v{r0}
    v_add_f32 v{r1}, 0x358637bd, v{r1}
    v_add_f32 v{r0}, v{r0}, v{t0}
    v_add_f32 v{r1}, v{r1}, v{t1}
    """)
for tl in range(4): a(f"ds_read_b32 v{vE+16+tl}, v{t+1} offset:{64*tl}", tag="bp")
a(f"v_mov_b32 v{vRING+8}, s{sONES}\nv_mov_b32 v{vRING+9}, s{sONES}")
a(f"v_add_u32 v{vRING+10}, s{sXR}, v{vL16}\nv_add_u32 v{vRING+11}, s{sXR}, v{t}")
a("s_waitcnt lgkmcnt(0)")
for tl in range(4):
    for r in range(4):
        ac = vACC + 4*tl + r
        a(f"v_mul_f32 v{vE+20+r}, v{vBP+4+r}, v{vE+16+tl}")
    for r in range(4):
        ac = vACC + 4*tl + r
        a(f"v_fma_f32 v{ac}, v{ac}, v{vBP+r}, -v{vE+20+r}")
    if tl < 2:
        phi2(vACC+4*tl, vACC+4*tl+1, vE+20, vE+21); phi2(vACC+4*tl+2, vACC+4*tl+3, vE+22, vE+23)
    a(f"v_cvt_pk_bf16_f32 v{vRING+2*tl}, v{vACC+4*tl}, v{vACC+4*tl+1}\nv_cvt_pk_bf16_f32 v{vRING+2*tl+1}, v{vACC+4*tl+2}, v{vACC+4*tl+3}")
for h in range(2):
    a(f"v_mfma_f32_16x16x16_bf16 {vr(vACC+4*h,4)}, {vr(vRING+2*h,2)}, {vr(vRING+4+2*h,2)}, 0")
for h in range(2):
    a(f"v_mfma_f32_16x16x16_bf16 {vr(vACC+8+4*h,4)}, {vr(vRING+2*h,2)}, {vr(vRING+8,2)}, 0")
for h in range(2): a(f"ds_write_b128 v{vRING+10}, {vr(vACC+4*h,4)} offset:{1024*h}")
for h in range(2): a(f"ds_write_b128 v{vRING+11}, {vr(vACC+8+4*h,4)} offset:{2048+64*h}")
a("s_waitcnt vmcnt(0) lgkmcnt(0)\ns_barrier")
save = list(a.vmq)
a(f"""
s_cmp_lt_u32 s{sW}, 3
s_cbranch_scc1 L_nokvred
s_cmp_eq_u32 s{sW}, 3
s_cbranch_scc1 L_zred
v_lshlrev_b32 v{t+1}, 3, v{L}
s_sub_u32 s{sT1}, s{sW}, 4
s_lshl_b32 s{sT1}, s{sT1}, 9
s_add_u32 s{sT0}, s{sT1}, 98304
v_add_u32 v{t}, s{sT0}, v{t+1}
""")
for w8 in range(8): a(f"ds_read_b64 {vr(vRING+2*w8,2)}, v{t} offset:{4096*w8}")
a(f"""
s_lshl_b32 s{sT2}, s{sJ}, 4
s_add_u32 s{sT2}, s{sT2}, s{sC}
s_lshl_b32 s{sT2}, s{sT2}, 11
s_add_u32 s{sT2}, s{sT2}, s{sT1}
s_add_u32 s{sT2}, s{sT2}, {KVP}
s_waitcnt lgkmcnt(0)
""")
for w8 in (1, 3, 5, 7):
    for q in range(2): a(f"v_add_f32 v{vRING+2*(w8-1)+q}, v{vRING+2*(w8-1)+q}, v{vRING+2*w8+q}")
for w8 in (2, 6):
    for q in range(2): a(f"v_add_f32 v{vRING+2*(w8-2)+q}, v{vRING+2*(w8-2)+q}, v{vRING+2*w8+q}")
for q in range(2): a(f"v_add_f32 v{vRING+q}, v{vRING+q}, v{vRING+8+q}")
a(f"buffer_store_dwordx2 {vr(vRING,2)}, v{t+1}, {srd(S_WS)}, s{sT2} offen sc1", track=False)
a("s_branch L_kvflag")
a.label("L_zred")
a(f"""
v_and_b32 v{t+1}, 31, v{L}
v_lshlrev_b32 v{t+1}, 2, v{t+1}
v_add_u32 v{t}, {98304+2048}, v{t+1}
""")
for w8 in range(8): a(f"ds_read_b32 v{vRING+w8}, v{t} offset:{4096*w8}")
a(f"""
s_lshl_b32 s{sT2}, s{sJ}, 4
s_add_u32 s{sT2}, s{sT2}, s{sC}
s_lshl_b32 s{sT2}, s{sT2}, 7
s_add_u32 s{sT2}, s{sT2}, {ZP}
s_waitcnt lgkmcnt(0)
""")
for w8 in range(1, 8): a(f"v_add_f32 v{vRING}, v{vRING}, v{vRING+w8}")
a(f"buffer_store_dword v{vRING}, v{t+1}, {srd(S_WS)}, s{sT2} offen sc1", track=False)
a.label("L_kvflag")
flag_store(0, sJ, sC)
a.label("L_nokvred")
a.vmq = save
poll(4, sJ, "R", wave=0, barrier=False)
colsum(1, 3, 3)
stamp("kvpub")
frags = []
for s in range(16):
    for tq in range(2):
        frags.append((vL16B, tq*16384 + s*1024, vACC+16+4*tq, vA+4*s, True, s == 0, None))
mfma_loop(frags)
a("s_barrier")
dma_block(0, f"s_lshl_b32 s{sPF}, s{sJJ}, 16\ns_add_u32 s{sPF}, s{sPF}, {RWO}", 8, "dwo")
a(f"v_lshlrev_b32 v{t}, 4, v{G}\nv_add_u32 v{t}, {ZCS}, v{t}")
for tq in range(2): a(f"ds_read_b128 {vr(vE+8+4*tq,4)}, v{t} offset:{64*(4+tq)}")
vXR = vA + 32
a(f"""
v_lshlrev_b32 v{t+1}, 10, v{I}
v_lshl_add_u32 v{t+1}, v{G}, 4, v{t+1}
s_lshl_b32 s{sT1}, s{sMT}, 14
s_add_u32 s{sT1}, s{sT1}, s{sCOL}
s_lshl_b32 s{sT2}, s{sKH}, 6
s_add_u32 s{sT1}, s{sT1}, s{sT2}
""")
a(f"buffer_load_dwordx4 {vr(vXR,4)}, v{t+1}, {srd(S_X)}, s{sT1} offen", tag="xr")
a(f"v_lshlrev_b32 v{t+1}, 4, v{G}")
for it, sp, add in ((0, sPU, 0), (1, sPU, 1), (2, sPH, 0)):
    a(f"s_add_u32 s{sT2}, s{sp}, {add}\ns_lshl_b32 s{sT2}, s{sT2}, 6")
    a(f"buffer_load_dwordx4 {vr(vB1+4*it,4)}, v{t+1}, {srd(S_B1)}, s{sT2} offen", tag="b1")
a("s_waitcnt lgkmcnt(0)")
for tq in range(2):
    for r in range(4): a(f"v_mul_f32 v{vE+20+r}, v{vS1}, v{vE+8+4*tq+r}")
    for r in range(4):
        ac = vACC + 16 + 4*tq + r
        a(f"v_fma_f32 v{ac}, v{ac}, v{vS2}, -v{vE+20+r}")
    b = vACC + 16 + 4*tq
    phi2(b, b+1, vE+20, vE+21); phi2(b+2, b+3, vE+22, vE+23)
    a(f"v_cvt_pk_bf16_f32 v{vKEEP+2*tq}, v{b}, v{b+1}\nv_cvt_pk_bf16_f32 v{vKEEP+2*tq+1}, v{b+2}, v{b+3}")
stamp("qdone")

a(f"""
s_lshl_b32 s{sT2}, s{sJ}, 15
s_and_b32 s{sT1}, s{sW}, 1
s_lshl_b32 s{sT1}, s{sT1}, 10
s_add_u32 s{sT2}, s{sT2}, s{sT1}
s_lshr_b32 s{sT1}, s{sW}, 1
s_lshl_b32 s{sT1}, s{sT1}, 13
s_add_u32 s{sT2}, s{sT2}, s{sT1}
s_add_u32 s{sT2}, s{sT2}, {KVP}
""")
poll(0, sJ, "A")
stamp("syncA")
for c in range(4):
    a(f"buffer_load_dwordx4 {vr(vRING+4*c,4)}, v{vL16}, {srd(S_WS)}, s{sT2} offen offset:{(c%2)*2048} sc1", tag="kvp")
    if c == 1: a(f"s_add_u32 s{sT2}, s{sT2}, 4096")
save = list(a.vmq)
a(f"""
s_cmp_lg_u32 s{sW}, 7
s_cbranch_scc1 L_noz
s_lshl_b32 s{sT2}, s{sJ}, 11
s_add_u32 s{sT2}, s{sT2}, {ZP}
""")
a(f"buffer_load_dwordx4 {vr(vRING+16,4)}, v{vL16}, {srd(S_WS)}, s{sT2} offen sc1", track=False)
a(f"buffer_load_dwordx4 {vr(vRING+20,4)}, v{vL16}, {srd(S_WS)}, s{sT2} offen offset:1024 sc1", track=False)
a("s_waitcnt vmcnt(0)")
for q in range(4): a(f"v_add_f32 v{vRING+16+q}, v{vRING+16+q}, v{vRING+20+q}")
for q in range(4): a(f"v_add_f32_dpp v{vRING+16+q}, v{vRING+16+q}, v{vRING+16+q} row_ror:8 row_mask:0xf bank_mask:0xf")
for swap in ("v_permlane32_swap_b32", "v_permlane16_swap_b32"):
    for q in range(4): a(f"v_mov_b32 v{vRING+20+q}, v{vRING+16+q}")
    for q in range(4): a(f"{swap} v{vRING+16+q}, v{vRING+20+q}")
    for q in range(4): a(f"v_add_f32 v{vRING+16+q}, v{vRING+16+q}, v{vRING+20+q}")
a(f"""
v_cvt_pk_bf16_f32 v{vRING+20}, v{vRING+16}, v{vRING+17}
v_cvt_pk_bf16_f32 v{vRING+21}, v{vRING+18}, v{vRING+19}
v_and_b32 v{t}, 7, v{L}
v_lshlrev_b32 v{t}, 3, v{t}
v_add_u32 v{t}, {ZZ}, v{t}
ds_write_b64 v{t}, {vr(vRING+20,2)}
""")
a.label("L_noz")
a.vmq = save
a(f"s_lshl_b32 s{sT0}, s{sW}, 10\ns_add_u32 s{sT0}, s{sT0}, {KVS}\nv_add_u32 v{t}, s{sT0}, v{vL16}\nv_add_u32 v{t+1}, {KVS}, v{vL16}")
a.wait_vm("kvp")
for q in range(4): a(f"v_add_f32 v{vRING+q}, v{vRING+q}, v{vRING+4+q}\nv_add_f32 v{vRING+8+q}, v{vRING+8+q}, v{vRING+12+q}")
for q in range(4): a(f"v_add_f32 v{vRING+q}, v{vRING+q}, v{vRING+8+q}")
a(f"ds_write_b128 v{t}, {vr(vRING,4)}\ns_waitcnt lgkmcnt(0)\ns_barrier")
for q in range(8): a(f"ds_read_b128 {vr(vRING+4*q,4)}, v{t+1} offset:{1024*q}")
a(f"v_lshlrev_b32 v{t}, 3, v{G}\nv_add_u32 v{t}, {ZZ}, v{t}")
for h in range(2): a(f"ds_read_b64 {vr(vE+12+2*h,2)}, v{t} offset:{32*h}")
a(f"""
s_lshl_b32 s{sT2}, s{sC}, 3
s_add_u32 s{sT2}, s{sT2}, s{sWM}
s_lshl_b32 s{sT2}, s{sT2}, 4
s_add_u32 s{sT2}, s{sT2}, s{sJ}
s_lshl_b32 s{sT2}, s{sT2}, 10
s_add_u32 s{sT2}, s{sT2}, {OFR}
s_waitcnt lgkmcnt(0)
""")
for h in range(2):
    a(f"v_mfma_f32_16x16x16_bf16 {vr(vACC+8+4*h,4)}, {vr(vE+12+2*h,2)}, {vr(vKEEP+2*h,2)}, 0")
for q in range(8): a(f"v_add_f32 v{vRING+q}, v{vRING+q}, v{vRING+8+q}\nv_add_f32 v{vRING+16+q}, v{vRING+16+q}, v{vRING+24+q}")
for q in range(8): a(f"v_add_f32 v{vRING+q}, v{vRING+q}, v{vRING+16+q}")
for h in range(2):
    a(f"v_cvt_pk_bf16_f32 v{vRING+8+2*h}, v{vRING+4*h}, v{vRING+4*h+1}\nv_cvt_pk_bf16_f32 v{vRING+9+2*h}, v{vRING+4*h+2}, v{vRING+4*h+3}")
for h in range(2):
    a(f"v_mfma_f32_16x16x16_bf16 {vr(vACC+4*h,4)}, {vr(vRING+8+2*h,2)}, {vr(vKEEP+2*h,2)}, 0")
for h in range(2):
    a(f"v_add_f32 v{vE+8+h}, 0x358637bd, v{vACC+8+4*h}\nv_rcp_f32 v{vE+8+h}, v{vE+8+h}")
for h in range(2):
    for r in range(4): a(f"v_mul_f32 v{vACC+4*h+r}, v{vACC+4*h+r}, v{vE+8+h}")
    a(f"v_cvt_pk_bf16_f32 v{vE+16+2*h}, v{vACC+4*h}, v{vACC+4*h+1}\nv_cvt_pk_bf16_f32 v{vE+17+2*h}, v{vACC+4*h+2}, v{vACC+4*h+3}")
a(f"buffer_store_dwordx4 {vr(vE+16,4)}, v{vL16}, {srd(S_WS)}, s{sT2} offen sc1")
flag_store(1, sC, sJ)
stamp("opub")
a("s_barrier")
a(f"""
s_lshl_b32 s{sPF2}, s{sW}, 13
s_add_u32 s{sPF2}, s{sPF2}, {24*4096}
s_mul_i32 s{sPF}, s{sJJ}, {RW2S}
s_add_u32 s{sPF}, s{sPF}, s{sPF2}
s_add_u32 s{sPF}, s{sPF}, {RW2}
""")
dma4(sPF2, sPF, tag="dw2y")
a(f"s_cmp_eq_u32 s{sW}, 7\ns_cbranch_scc1 L_now2y\ns_add_u32 s{sPF}, s{sPF}, 4096\ns_add_u32 s{sPF2}, s{sPF2}, 4096")
dma4(sPF2, sPF, track=False)
a.label("L_now2y")
a(f"""
s_lshl_b32 s{sT2}, s{sMT}, 4
s_lshl_b32 s{sT1}, s{sKH}, 3
s_add_u32 s{sT2}, s{sT2}, s{sT1}
s_lshl_b32 s{sT2}, s{sT2}, 10
s_add_u32 s{sT2}, s{sT2}, {OFR}
s_lshl_b32 s{sT1}, s{sKH}, 15
v_add_u32 v{vTMP}, s{sT1}, v{vL16}
s_waitcnt vmcnt(0)
""")
poll(1, sC, "8")
stamp("syncB")
for q in range(8):
    a(f"buffer_load_dwordx4 {vr(vA+4*q,4)}, v{vL16}, {srd(S_WS)}, s{sT2} offen offset:{(q%4)*1024} sc1", tag=f"o{q}")
    if q == 3: a(f"s_add_u32 s{sT2}, s{sT2}, 4096")
frags = []
for q in range(8):
    for tl in range(4):
        frags.append((vTMP, (q*4+tl)*1024, vACC+4*tl, vA+4*q, True, q == 0, f"o{q}" if tl == 0 else None))
mfma_loop(frags)
def exchange(base):
    l0 = a.newlabel("L_ex0"); l1 = a.newlabel("L_ex1")
    a(f"""
    s_lshl_b32 s{sT0}, s{sW}, 11
    s_add_u32 s{sT0}, s{sT0}, {base}
    v_add_u32 v{t}, s{sT0}, v{vL16}
    s_xor_b32 s{sT1}, s{sW}, 4
    s_lshl_b32 s{sT1}, s{sT1}, 11
    s_add_u32 s{sT1}, s{sT1}, {base}
    v_add_u32 v{t+1}, s{sT1}, v{vL16}
    s_nop 4
    s_cmp_eq_u32 s{sKH}, 0
    s_cbranch_scc0 {l0}
    """)
    a(f"ds_write_b128 v{t}, {vr(vACC+8,4)}\nds_write_b128 v{t}, {vr(vACC+12,4)} offset:1024", track=False)
    for q in range(8): a(f"v_mov_b32 v{vACC+16+q}, v{vACC+q}")
    a(f"s_branch {l1}")
    a.label(l0)
    a(f"ds_write_b128 v{t}, {vr(vACC,4)}\nds_write_b128 v{t}, {vr(vACC+4,4)} offset:1024", track=False)
    for q in range(8): a(f"v_mov_b32 v{vACC+16+q}, v{vACC+8+q}")
    a.label(l1)
    a("s_waitcnt lgkmcnt(0)\ns_barrier")
    a(f"ds_read_b128 {vr(vACC,4)}, v{t+1}\nds_read_b128 {vr(vACC+4,4)}, v{t+1} offset:1024\ns_waitcnt lgkmcnt(0)")
    for q in range(8): a(f"v_add_f32 v{vACC+16+q}, v{vACC+16+q}, v{vACC+q}")
exchange(65536)
def add_resid(src, dst):
    for d in range(4):
        x0 = vE + 8 + 2*(d & 1)
        a(f"""
        v_lshlrev_b32 v{x0}, 16, v{src+d}
        v_and_b32 v{x0+1}, 0xffff0000, v{src+d}
        v_add_f32 v{x0}, v{x0}, v{vACC+16+2*d}
        v_add_f32 v{x0+1}, v{x0+1}, v{vACC+17+2*d}
        v_cvt_pk_bf16_f32 v{dst+d}, v{x0}, v{x0+1}
        """)
add_resid(vXR, vKEEP)
a(f"""
s_lshr_b32 s{sT1}, s{sCOL}, 6
s_add_u32 s{sT1}, s{sT1}, s{sKH}
s_lshl_b32 s{sT2}, s{sMT}, 4
s_add_u32 s{sT2}, s{sT2}, s{sT1}
s_lshl_b32 s{sT2}, s{sT2}, 10
s_add_u32 s{sT2}, s{sT2}, {HFR}
""")
a(f"buffer_store_dwordx4 {vr(vKEEP,4)}, v{vL16}, {srd(S_WS)}, s{sT2} offen sc1")
a(f"v_mov_b32 v{vE+8}, 0\nv_mov_b32 v{vE+9}, 0")
for d in range(4):
    a(f"v_dot2c_f32_bf16 v{vE+8}, s{sONES}, v{vKEEP+d}\nv_dot2c_f32_bf16 v{vE+9}, v{vKEEP+d}, v{vKEEP+d}")
greduce(vE+8, vE+9)
a(f"""
v_lshlrev_b32 v{t}, 3, v{I}
s_lshl_b32 s{sT2}, s{sMT}, 11
s_lshl_b32 s{sT1}, s{sT1}, 7
s_add_u32 s{sT2}, s{sT2}, s{sT1}
s_add_u32 s{sT2}, s{sT2}, {HST}
s_mov_b64 s[{sEX}:{sEX+1}], exec
s_mov_b64 exec, 0xffff
""")
a(f"buffer_store_dwordx2 {vr(vE+8,2)}, v{t}, {srd(S_WS)}, s{sT2} offen sc1")
a(f"s_mov_b64 exec, s[{sEX}:{sEX+1}]")
flag_store(2, sC, sJ)
stamp("hpub")
a("s_barrier")
dma_block(0, f"s_mul_i32 s{sPF}, s{sJ}, {96*1024}\ns_add_u32 s{sPF}, s{sPF}, {RW1}", 12, "dw1")
a(f"""
s_lshl_b32 s{sT2}, s{sC}, 3
s_add_u32 s{sT2}, s{sT2}, s{sW}
s_lshl_b32 s{sXO}, s{sT2}, 11
s_add_u32 s{sXO}, s{sXO}, {HST}
s_lshl_b32 s{sT2}, s{sT2}, 14
s_add_u32 s{sT2}, s{sT2}, {HFR}
v_lshlrev_b32 v{vTMP}, 3, v{I}
v_lshl_add_u32 v{vTMP}, v{G}, 9, v{vTMP}
s_waitcnt vmcnt(0)
s_barrier
""")
colsum(1, 7, -1)
poll(2, sC, "8")
stamp("syncC")
for q in range(4): a(f"buffer_load_dwordx2 {vr(vE+16+2*q,2)}, v{vTMP}, {srd(S_WS)}, s{sXO} offen offset:{128*q} sc1", tag="hst")
hl = []
for s in range(16):
    pre = f"s_add_u32 s{sPF}, s{sPF}, 4096\n" if (s % 4 == 0 and s > 0) else ""
    hl.append((pre + f"buffer_load_dwordx4 {vr(vA+4*s,4)}, v{vL16}, {srd(S_WS)}, s{sPF} offen offset:{(s%4)*1024} sc1", f"h{s}"))
a(f"s_mov_b32 s{sPF}, s{sT2}")
for _ in range(PD): txt, tg = hl.pop(0); a(txt, tag=tg)
a(f"v_lshlrev_b32 v{vTMP}, 4, v{G}\nv_add_u32 v{vTMP}, {ZCS}, v{vTMP}")
a.wait_vm("hst")
a(f"""
v_add_f32 v{vS1}, v{vE+16}, v{vE+18}
v_add_f32 v{vS2}, v{vE+17}, v{vE+19}
v_add_f32 v{vE+20}, v{vE+20}, v{vE+22}
v_add_f32 v{vE+21}, v{vE+21}, v{vE+23}
v_add_f32 v{vS1}, v{vS1}, v{vE+20}
v_add_f32 v{vS2}, v{vS2}, v{vE+21}
""")
for aa in range(2): a(f"ds_read_b128 {vr(vE+16+4*aa,4)}, v{vTMP} offset:{64*aa}", tag="cs0")
stats_final()
a(f"s_lshl_b32 s{sXO}, s{sC}, 3\ns_add_u32 s{sXO}, s{sXO}, s{sW}\ns_mul_i32 s{sXO}, s{sXO}, 43")
def epi3(p, csbase):
    def chain(aa, r):
        ac = vACC + 4*(2*p+aa) + r
        bsrc = vB1 + 4*p + 2*aa + (r >> 1)
        x0, x1, x2 = vE+8+3*(r&1), vE+9+3*(r&1), vE+10+3*(r&1)
        cs = csbase + 4*aa + r
        return [f"v_lshlrev_b32 v{x0}, 16, v{bsrc}" if r % 2 == 0 else f"v_and_b32 v{x0}, 0xffff0000, v{bsrc}",
            f"v_fma_f32 v{x0}, -v{vS1}, v{cs}, v{x0}",
            f"v_fma_f32 v{ac}, v{ac}, v{vS2}, v{x0}",
            f"v_mul_f32 v{x1}, 0x3fb8aa3b, v{ac}",
            f"v_min_f32 v{x1}, 0x42200000, v{x1}",
            f"v_exp_f32 v{x1}, v{x1}",
            f"v_add_f32 v{x2}, 2.0, v{x1}",
            f"v_mul_f32 v{x1}, v{x1}, v{x2}",
            f"v_add_f32 v{x2}, 2.0, v{x1}",
            f"v_rcp_f32 v{x2}, v{x2}",
            f"v_mul_f32 v{ac}, v{ac}, v{x1}",
            f"v_mul_f32 v{ac}, v{ac}, v{x2}"]
    out = []
    for aa in range(2):
        for r in (0, 2):
            c0, c1 = chain(aa, r), chain(aa, r+1)
            for x, y in zip(c0, c1): out += [x, y]
    for d in range(4):
        b = vACC + 8*p + 2*d
        out.append(f"v_cvt_pk_bf16_f32 v{vACC+8*p+d}, v{b}, v{b+1}")
    return out
def epi3_store(p):
    sp, add = ((sPU, 0), (sPU, 1), (sPH, 0))[p]
    a(f"s_add_u32 s{sT2}, s{sp}, s{sXO}\ns_add_u32 s{sT2}, s{sT2}, {add}\ns_lshl_b32 s{sT2}, s{sT2}, 10\ns_add_u32 s{sT2}, s{sT2}, {AFR}")
    a(f"buffer_store_dwordx4 {vr(vACC+8*p,4)}, v{vL16}, {srd(S_WS)}, s{sT2} offen sc1")
frags = []
for s in range(16):
    for tl in range(4):
        frags.append((vL16, tl*16384 + s*1024, vACC+4*tl, vA+4*s, True, s == 0, f"h{s}" if tl == 0 else None))
nA = len(frags)
for s in range(16):
    for tl in range(4, 6):
        frags.append((vL16B, (tl-4)*16384 + s*1024, vACC+4*tl, vA+4*s, True, s == 0, None))
e0 = epi3(0, vE+16)
extra = {}
for f in range(nA + 3, len(frags)):
    extra[f] = [e0.pop(0) for _ in range(2) if e0]
mfma_loop(frags, extra, al=hl)
stamp("p3loop")
for p in (1, 2):
    for aa in range(2):
        a(f"ds_read_b128 {vr(vRING+8*(p-1)+4*aa,4)}, v{vTMP} offset:{64*(2*p+aa)}", tag=f"cs{p}")
for e in e0: a(e)
epi3_store(0)
for p in (1, 2):
    a.wait_lg(f"cs{p}")
    for e in epi3(p, vRING+8*(p-1)): a(e)
    epi3_store(p)
flag_store(3, sC, sJ)
stamp("apub")
a("s_barrier")
dma_block(0, f"s_mul_i32 s{sPF}, s{sJJ}, {RW2S}\ns_add_u32 s{sPF}, s{sPF}, {RW2}", 12, "dw2x")
a(f"""
s_mul_i32 s{sT2}, s{sMT}, 43
s_lshl_b32 s{sT2}, s{sT2}, 10
s_add_u32 s{sT2}, s{sT2}, {AFR}
s_add_u32 s{sPF2}, s{sW}, 39
s_lshl_b32 s{sPF2}, s{sPF2}, 12
s_mul_i32 s{sPF}, s{sJJ}, {RW2S}
s_add_u32 s{sPF}, s{sPF}, s{sPF2}
s_add_u32 s{sPF}, s{sPF}, {RW2}
s_lshr_b32 s{sPF2}, s{sW}, 1
s_mul_i32 s{sPF2}, s{sPF2}, 20
s_and_b32 s{sT1}, s{sW}, 1
s_add_u32 s{sPF2}, s{sPF2}, s{sT1}
s_lshl_b32 s{sPF2}, s{sPF2}, 12
s_waitcnt vmcnt(0)
""")
poll(3, sC, "8")
stamp("syncD")
a(f"s_cmp_eq_u32 s{sKH}, 0\ns_cbranch_scc0 L_p4k1")
def p4(kh):
    ks = list(range(20)) + [39, 40] if kh == 0 else list(range(20, 39)) + [41, 42]
    slot = {39: 0, 40: 1, 41: 20, 42: 21}
    n = len(ks)
    cur = 0
    al = []
    for q, k in enumerate(ks):
        pre = ""
        while k*1024 - cur >= 4096:
            step = ((k*1024 - cur) // 4096) * 4096
            pre += f"s_add_u32 s{sT2}, s{sT2}, {step}\n"; cur += step
        al.append((pre + f"buffer_load_dwordx4 {vr(vA+4*q,4)}, v{vL16}, {srd(S_WS)}, s{sT2} offen offset:{k*1024-cur} sc1", f"a{q}"))
    for _ in range(PD): txt, tg = al.pop(0); a(txt, tag=tg)
    def mk(qs, first):
        fr = []
        for q in qs:
            sl = slot.get(ks[q], ks[q])
            for tl in range(4):
                off = sl*4096 + tl*1024
                fr.append(((vL16, vL16B, vL16C)[off >> 16], off & 0xffff, vACC+4*tl, vA+4*q, True, first and q == 0, f"a{q}" if tl == 0 else None))
        return fr
    mfma_loop(mk(range(0, 8), True), al=al)
    a("s_waitcnt lgkmcnt(0)\ns_barrier")
    if kh == 0: dma4(sPF2, sPF, tag="dov")
    mfma_loop(mk(range(8, n-2), False), al=al)
    a("s_waitcnt vmcnt(0) lgkmcnt(0)\ns_barrier")
    mfma_loop(mk(range(n-2, n), False))
vmq_save = list(a.vmq)
p4(0)
a("s_branch L_p4done")
a.label("L_p4k1")
a.vmq = list(vmq_save)
p4(1)
a.label("L_p4done")
a("s_nop 7")
stamp("p4loop")
exchange(8192)
add_resid(vKEEP, vE+12)
a(f"""
v_lshlrev_b32 v{t}, 10, v{I}
v_lshl_add_u32 v{t}, v{G}, 4, v{t}
s_lshl_b32 s{sT1}, s{sMT}, 14
s_add_u32 s{sT1}, s{sT1}, s{sCOL}
s_lshl_b32 s{sT2}, s{sKH}, 6
s_add_u32 s{sT1}, s{sT1}, s{sT2}
""")
a(f"buffer_store_dwordx4 {vr(vE+12,4)}, v{t}, {srd(S_OUT)}, s{sT1} offen")
if STAMPS:
    a("s_waitcnt vmcnt(0)")
    stamp("end")
    a("s_memtime s[96:97]\ns_waitcnt lgkmcnt(0)\ns_sub_u32 s96, s96, s98")
    a(f"""
    s_lshl_b32 s{sT0}, s2, 10
    s_lshl_b32 s{sT1}, s{sW}, 7
    s_add_u32 s{sT0}, s{sT0}, s{sT1}
    s_add_u32 s{sT0}, s{sT0}, {STAMP}
    s_mov_b64 exec, 1
    """)
    a(f"v_mov_b32 v{vE+8}, s100\nbuffer_store_dword v{vE+8}, v{vZERO}, {srd(S_WS)}, s{sT0} offen offset:124\ns_nop 1")
    a(f"v_mov_b32 v{vE+8}, s96\nbuffer_store_dword v{vE+8}, v{vZERO}, {srd(S_WS)}, s{sT0} offen offset:120\ns_nop 1")
    for n in range(nstamp[0]):
        a(f"v_mov_b32 v{vE+8}, s{64+2*n}\nbuffer_store_dword v{vE+8}, v{vZERO}, {srd(S_WS)}, s{sT0} offen offset:{4*n}\ns_nop 1")
a.label("L_end")
a("s_endpgm")
a.raw(f""".section .rodata,"a"
.p2align 6
.amdhsa_kernel {KNAME}
  .amdhsa_next_free_vgpr 256
  .amdhsa_next_free_sgpr 102
  .amdhsa_accum_offset 256
  .amdhsa_group_segment_fixed_size 0
  .amdhsa_kernarg_size 80
  .amdhsa_user_sgpr_count 2
  .amdhsa_user_sgpr_kernarg_segment_ptr 1
  .amdhsa_system_sgpr_workgroup_id_x 1
.end_amdhsa_kernel""")
open(OUTF, "w").write(a.text())
print("stamps:", nstamp[0], stamp_names)
```

```python
import sys
from asmgen import Asm
KNAME = "sequential_preLN__linear_attn_block__dense_activation_mish__prompt_kernel"
STAMPS = "--stamps" in sys.argv
ONLY = [x.split("=")[1].split(",") for x in sys.argv if x.startswith("--only=")]
OUTF = [a for a in sys.argv[1:] if not a.startswith("--")][0]

FLAGS = 0; KVP = 0x40000; ZP = 0xC0000; OFR = 0x200000; HFR = 0x400000; AFR = 0x600000; HST = 0xC00000
RW1 = 0xD00000
RWO = 0xE80000
RW2 = 0xF00000
RW2S = 176*1024
STAMP = 0x1100000
RQ = 0x1200000
ZB = 159744; ZCS = ZB; ZKV = ZB + 1024; ZZ = ZB + 2048; ZFL = ZB + 3072
KVS = 98304
RPS = 131072
S_X, S_WQKV, S_WO, S_W1, S_B1, S_W2, S_OUT, S_DBG, S_WS = 8, 12, 16, 20, 24, 28, 32, 36, 40
sC, sJ, sW = 44, 45, 46
sT0, sT1, sT2, sPF, sPF2, sCOL = 47, 48, 49, 50, 51, 52
sMT, sKH, sMW = 53, 54, 55
sPU = 56; sPOLL = 57; sEX = 58
sSELLO, sSELHI, sONES = 60, 61, 62
sXO, sXR, sROT, sWM, sPH, sJJ = 63, 3, 4, 5, 6, 7
sEP = 59; sEX = 90; sRW = 92
ZEP = ZB + 3200
def srd(b): return f"s[{b}:{b+3}]"
vL16, vRDA, vL16B, vL16C, vRDX, vRDB, vZERO = 1, 2, 3, 4, 5, 6, 7
vRDY = 0
vWA = 8; vGO = 16; vS1, vS2, vTMP = 17, 18, 19
vKEEP = 20; vRING = 24; vACC = 56; vE = 80; vA = 104
vBP = 208; vRAW1 = 216; vRP = 192; vB1 = 192
def vr(b, n): return f"v[{b}:{b+n-1}]"

a = Asm()
PD = 8
NPF = 4
XP1 = int([x.split('=')[1] for x in sys.argv if x.startswith('--xp1=')][0]) if any(x.startswith('--xp1=') for x in sys.argv) else 16
nstamp = [0]; stamp_names = []
def fstamp(n):
    if "--fine" in sys.argv:
        a(f"s_waitcnt lgkmcnt(0)\ns_memrealtime s[{64+2*n}:{65+2*n}]\ns_waitcnt lgkmcnt(0)")
        nstamp[0] = max(nstamp[0], n+1)
def stamp(name=""):
    if not STAMPS: return
    if ONLY and name not in ONLY[0]: return
    n = nstamp[0]; nstamp[0] += 1; stamp_names.append(name)
    if "--fine" in sys.argv: n = {"b1": 5, "end": 10}[name]; nstamp[0] = 11
    assert n < 13
    a(f"s_waitcnt lgkmcnt(0)\ns_memrealtime s[{64+2*n}:{65+2*n}]\ns_waitcnt lgkmcnt(0)")

hdr = open("sequential_preLN__linear_attn_block__dense_activation_mish__prompt.s.ref").read().split("; @launch")[0]
a.raw(hdr + "; @launch grid=(256,1,1) block=(512,1,1) lds=163840")
a.raw(f'.amdgcn_target "amdgcn-amd-amdhsa--gfx950"\n.text\n.globl {KNAME}\n.p2align 8\n.type {KNAME},@function')
a.label(KNAME)
L, I, G, CB, RV, XRD = vE, vE+1, vE+2, vE+3, vE+4, vE+5
t = vE + 6
a("s_cmp_ge_u32 s2, 256\ns_cbranch_scc1 L_end")
if STAMPS: a("s_memrealtime s[100:101]\ns_memtime s[98:99]")
a(f"""
s_load_dwordx4 s[64:67], s[0:1], 0
s_load_dwordx2 s[68:69], s[0:1], 16
s_load_dwordx4 s[72:75], s[0:1], 32
s_load_dwordx4 s[76:79], s[0:1], 48
s_load_dwordx4 s[80:83], s[0:1], 64
s_and_b32 s3, s2, 7
s_lshl_b32 s3, s3, 1
s_lshr_b32 s4, s2, 7
s_add_u32 s{sC}, s3, s4
s_lshr_b32 s{sJ}, s2, 3
s_and_b32 s{sJ}, s{sJ}, 15
v_lshrrev_b32 v{vTMP}, 6, v0
v_and_b32 v{L}, 63, v0
v_readfirstlane_b32 s{sW}, v{vTMP}
s_mov_b32 s{sSELLO}, 0x05040100
s_mov_b32 s{sSELHI}, 0x07060302
s_mov_b32 s{sONES}, 0x3f803f80
v_mov_b32 v{vZERO}, 0
v_lshlrev_b32 v{vL16}, 4, v{L}
v_and_b32 v{I}, 15, v{L}
v_lshrrev_b32 v{G}, 4, v{L}
v_and_b32 v{CB}, 3, v{L}
v_bfe_u32 v{RV}, v{L}, 2, 2
v_lshrrev_b32 v{t+1}, 3, v{I}
v_and_b32 v{t}, 1, v{G}
v_lshl_or_b32 v{t+1}, v{t}, 1, v{t+1}
v_xor_b32 v{t+1}, v{t+1}, v{I}
v_lshl_add_u32 v{t+1}, v{G}, 4, v{t+1}
v_lshlrev_b32 v{vRDA}, 4, v{t+1}
v_add_u32 v{vRDB}, 0x10000, v{vRDA}
v_xor_b32 v{vRDX}, 64, v{vRDA}
v_add_u32 v{vRDY}, 0x10000, v{vRDX}
v_add_u32 v{vL16B}, 0x10000, v{vL16}
v_add_u32 v{vL16C}, 0x20000, v{vL16}
s_xor_b32 s{sRW}, s{sW}, 4
s_and_b32 s{sMW}, s{sW}, 3
s_lshr_b32 s{sKH}, s{sW}, 2
s_lshl_b32 s{sMT}, s{sC}, 3
s_lshr_b32 s{sT0}, s{sJ}, 3
s_lshl_b32 s{sWM}, s{sT0}, 2
s_add_u32 s{sMT}, s{sMT}, s{sWM}
s_add_u32 s{sMT}, s{sMT}, s{sMW}
s_xor_b32 s{sWM}, s{sWM}, s{sW}
s_and_b32 s{sJJ}, s{sJ}, 7
s_lshl_b32 s{sROT}, s{sJJ}, 1
s_lshl_b32 s{sCOL}, s{sJJ}, 7
s_mul_i32 s{sT0}, s{sJ}, 3
s_and_b32 s{sT1}, s{sJ}, 1
s_add_u32 s{sPU}, s{sT0}, s{sT1}
s_xor_b32 s{sT1}, s{sT1}, 1
s_lshl_b32 s{sT1}, s{sT1}, 1
s_add_u32 s{sPH}, s{sT0}, s{sT1}
s_lshl_b32 s{sT0}, s{sJ}, 1
s_add_u32 s{sT0}, s{sT0}, 10
s_cmp_lt_u32 s{sJ}, 10
s_cselect_b32 s{sPU}, s{sPU}, s{sT0}
s_cselect_b32 s{sPH}, s{sPH}, s{sT0}
s_cmp_eq_u32 s{sJ}, 15
s_cselect_b32 s{sPH}, 42, s{sPH}
""")
def mk_srd(b, lo, nbytes):
    a(f"s_mov_b32 s{b}, s{lo}\ns_and_b32 s{b+1}, s{lo+1}, 0xffff\ns_mov_b32 s{b+2}, {nbytes}\ns_mov_b32 s{b+3}, 0x00020000")
def perm(raw, out):
    for d in range(4):
        for p in range(2):
            a(f"v_perm_b32 v{out+4*d+p}, v{raw+4*(2*p+1)+d}, v{raw+4*(2*p)+d}, s{sSELLO}")
            a(f"v_perm_b32 v{out+4*d+2+p}, v{raw+4*(2*p+1)+d}, v{raw+4*(2*p)+d}, s{sSELHI}")

a(f"""
v_sub_u32 v{t}, 0, v{G}
v_and_b32 v{t}, 3, v{t}
v_xor_b32 v{t}, v{t}, v{CB}
v_lshrrev_b32 v{vGO}, 2, v{L}
v_lshlrev_b32 v{vGO}, 10, v{vGO}
v_lshl_add_u32 v{vGO}, v{t}, 4, v{vGO}
s_lshl_b32 s{sXO}, s{sC}, 3
s_add_u32 s{sXO}, s{sXO}, s{sWM}
s_lshl_b32 s{sXO}, s{sXO}, 14
s_lshl_b32 s{sXR}, s{sW}, 14
s_add_u32 s{sXR}, s{sXR}, 24576
v_lshrrev_b32 v{t}, 2, v{I}
v_sub_u32 v{t}, 0, v{t}
v_and_b32 v{t}, 3, v{t}
v_xor_b32 v{t}, v{t}, v{G}
v_lshlrev_b32 v{t}, 4, v{t}
v_lshl_add_u32 v{t}, v{I}, 6, v{t}
v_add_u32 v{XRD}, s{sXR}, v{t}
v_lshrrev_b32 v{vWA}, 1, v{G}
v_and_b32 v{vWA+1}, 1, v{G}
v_lshlrev_b32 v{vWA+2}, 2, v{RV}
v_lshl_add_u32 v{vWA+2}, v{vWA}, 4, v{vWA+2}
v_lshrrev_b32 v{vWA+3}, 1, v{RV}
v_lshl_add_u32 v{vWA+3}, v{vWA}, 1, v{vWA+3}
v_and_b32 v{vWA+4}, 1, v{RV}
v_mov_b32 v{t}, {ZFL}
ds_write_b32 v{t}, v{vZERO}
ds_write_b32 v{t}, v{vZERO} offset:4
ds_write_b32 v{t}, v{vZERO} offset:8
ds_write_b32 v{t}, v{vZERO} offset:12
s_waitcnt lgkmcnt(0)
""")
def xdma(s_, track=True):
    a(f"s_add_u32 m0, s{sXR}, {s_*1024}\ns_add_u32 s{sPF2}, s{sROT}, {s_}\ns_and_b32 s{sPF2}, s{sPF2}, 15\ns_lshl_b32 s{sPF2}, s{sPF2}, 6\ns_add_u32 s{sPF2}, s{sPF2}, s{sXO}")
    a(f"buffer_load_dwordx4 v{vGO}, {srd(S_X)}, s{sPF2} offen lds", tag=f"xd{s_}", track=track)
mk_srd(S_WQKV, 66, 512*1536*2)
mk_srd(S_WS, 82, 0x10000000)
mk_srd(S_X, 64, 2048*512*2)
mk_srd(S_WO, 68, 512*512*2)
mk_srd(S_W1, 72, 512*1376*2)
mk_srd(S_B1, 74, 1376*2)
mk_srd(S_W2, 76, 1376*512*2)
mk_srd(S_OUT, 78, 2048*512*2)
mk_srd(S_DBG, 80, 256)
def raw4(srdb, go, stride):
    for r in range(4):
        a(f"buffer_load_dwordx4 {vr(vRP+4*r,4)}, v{go}, {srd(srdb)}, s{sPF} offen", track=False)
        if r < 3: a(f"s_add_u32 s{sPF}, s{sPF}, {stride}")
g = t
fstamp(7)
a(f"""
s_cmp_lt_u32 s{sRW}, 4
s_cbranch_scc1 L_rx
s_cmp_eq_u32 s{sRW}, 7
s_cbranch_scc1 L_r7
s_cmp_eq_u32 s{sRW}, 6
s_cbranch_scc1 L_rx
; ---- waves 4,5: wqkv unit. sec = (j odd) ? 2 : (w-4) ; odd j wave 5: no role
s_and_b32 s{sT0}, s{sJ}, 1
s_sub_u32 s{sT1}, s{sRW}, 4
s_cmp_eq_u32 s{sT0}, 1
s_cselect_b32 s{sT2}, 2, s{sT1}             ; sec
s_add_u32 s{sT0}, s{sT2}, 1
s_cmp_eq_u32 s{sT2}, 2
s_cselect_b32 s{sT0}, 0, s{sT0}
s_lshl_b32 s{sT0}, s{sT0}, 10
s_lshr_b32 s{sT1}, s{sJ}, 1
s_lshl_b32 s{sT1}, s{sT1}, 7
s_add_u32 s{sT0}, s{sT0}, s{sT1}
s_mul_i32 s{sPF}, s{sC}, {32*3072}
s_add_u32 s{sPF}, s{sPF}, s{sT0}
s_mov_b32 s{sT0}, 3072
v_mul_lo_u32 v{g}, v{vWA+2}, s{sT0}
v_lshl_add_u32 v{g}, v{vWA+1}, 6, v{g}
v_lshl_add_u32 v{g}, v{CB}, 4, v{g}
""")
raw4(S_WQKV, g, 3072)
fstamp(8)
a("s_branch L_rx")
a.label("L_r7")
if "--nopf" not in sys.argv:
    a(f"""
    s_getpc_b64 s[{sT0+1}:{sT0+2}]
    L_pfpc:
    v_lshlrev_b32 v{t}, 7, v{L}
    v_mov_b32 v{t+3}, s{sT2}
    v_add_co_u32 v{t+2}, vcc, s{sT1}, v{t}
    v_addc_co_u32 v{t+3}, vcc, 0, v{t+3}, vcc
    s_mov_b32 s{sT0}, L_end-L_pfpc
    s_mov_b64 s[{sEX}:{sEX+1}], exec
    """)
    for q in range(NPF):
        a(f"v_cmp_gt_u32 vcc, s{sT0}, v{t}\ns_and_b64 exec, exec, vcc\ns_cbranch_execz L_pfx")
        a(f"global_load_dword v{vKEEP+(q&3)}, v[{t+2}:{t+3}], off", track=False)
        if q < NPF-1: a(f"v_add_co_u32 v{t+2}, vcc, 0x2000, v{t+2}\nv_addc_co_u32 v{t+3}, vcc, 0, v{t+3}, vcc\nv_add_u32 v{t}, 0x2000, v{t}")
    a(f"L_pfx:\ns_mov_b64 exec, s[{sEX}:{sEX+1}]")
a(f"""
s_cmp_lg_u32 s2, 0
s_cbranch_scc1 L_rx
s_memrealtime s[{sT0+1}:{sT0+2}]
s_waitcnt lgkmcnt(0)
s_or_b32 s{sT1}, s{sT1}, 1
v_mov_b32 v{t+6}, s{sT1}
s_mov_b64 s[{sEX}:{sEX+1}], exec
s_mov_b64 exec, 1
""")
a(f"buffer_store_dword v{t+6}, v{vZERO}, {srd(S_DBG)}, 0 offen sc1", track=False)
a(f"s_mov_b64 exec, s[{sEX}:{sEX+1}]\ns_branch L_rx")
a.label("L_rx")
for s in range(XP1): xdma(s, track=False)
fstamp(9)
def get_epoch():
    lp = a.newlabel("L_ep"); lx = a.newlabel("L_epx")
    a(f"s_mov_b32 s{sPOLL}, 0")
    a.label(lp)
    a(f"buffer_load_dword v{t+2}, v{vZERO}, {srd(S_DBG)}, 0 offen sc1", track=False)
    a(f"""
    s_add_u32 s{sPOLL}, s{sPOLL}, 1
    s_waitcnt vmcnt(0)
    v_readfirstlane_b32 s{sEP}, v{t+2}
    s_cmp_gt_u32 s{sPOLL}, 200000
    s_cbranch_scc1 {lx}
    s_cmp_eq_u32 s{sEP}, 0
    s_cbranch_scc1 {lp}
    """)
    a.label(lx)
def flag_store(k, grp, mem, wreg=None):
    wreg = sW if wreg is None else wreg
    a(f"""
    s_lshl_b32 s{sT0}, s{grp}, 4
    s_add_u32 s{sT0}, s{sT0}, s{mem}
    s_add_u32 s{sT0}, s{sT0}, {k*256}
    s_lshl_b32 s{sT0}, s{sT0}, 7
    s_lshl_b32 s{sT1}, s{wreg}, 2
    s_add_u32 s{sT0}, s{sT0}, s{sT1}
    v_mov_b32 v{vTMP}, s{sEP}
    s_mov_b64 s[{sEX}:{sEX+1}], exec
    s_mov_b64 exec, 1
    s_waitcnt vmcnt(0)
    """)
    a(f"buffer_store_dword v{vTMP}, v{vZERO}, {srd(S_WS)}, s{sT0} offen sc1", track=False)
    a(f"s_mov_b64 exec, s[{sEX}:{sEX+1}]")
def mfma_loop(frags, extra=None, depth=6, al=None):
    n = len(frags)
    def rd(f):
        ad, off = frags[f][0], frags[f][1]
        a(f"ds_read_b128 {vr(vRING+4*(f%8),4)}, v{ad} offset:{off}", tag=f"bf{f}")
    a("s_setprio 2")
    for f in range(min(depth, n)): rd(f)
    for f in range(n):
        ad, off, acc, areg, tr, first, at = frags[f]
        if at is not None: a.wait_vm(at)
        a.wait_lg(f"bf{f}")
        w = vr(vRING+4*(f%8),4); x = vr(areg,4); c = "0" if first else vr(acc,4)
        if tr: a(f"v_mfma_f32_16x16x32_bf16 {vr(acc,4)}, {w}, {x}, {c}")
        else:  a(f"v_mfma_f32_16x16x32_bf16 {vr(acc,4)}, {x}, {w}, {c}")
        if al and at is not None:
            txt, tg = al.pop(0); a(txt, tag=tg)
        if extra and f in extra:
            for e in extra[f]: a(e)
        if f + depth < n: rd(f + depth)
    a("s_setprio 0")
def greduce(r1, r2):
    for swap in ("v_permlane32_swap_b32", "v_permlane16_swap_b32"):
        a(f"""
        v_mov_b32 v{t}, v{r1}
        v_mov_b32 v{t+1}, v{r2}
        {swap} v{r1}, v{t}
        {swap} v{r2}, v{t+1}
        v_add_f32 v{r1}, v{r1}, v{t}
        v_add_f32 v{r2}, v{r2}, v{t+1}
        """)
def stats_final():
    greduce(vS1, vS2)
    a(f"""
    v_mul_f32 v{vS1}, 0x3b000000, v{vS1}
    v_mul_f32 v{vS2}, 0x3b000000, v{vS2}
    v_fma_f32 v{vS2}, -v{vS1}, v{vS1}, v{vS2}
    v_max_f32 v{vS2}, 0, v{vS2}
    v_add_f32 v{vS2}, 0x3727c5ac, v{vS2}
    v_rsq_f32 v{vS2}, v{vS2}
    v_mul_f32 v{vS1}, v{vS1}, v{vS2}
    """)

def dma4(lds_expr_sgpr, src_sgpr, n=4, tag="dma", track=True):
    a(f"s_mov_b32 m0, s{lds_expr_sgpr}\ns_nop 0")
    for q in range(n):
        a(f"buffer_load_dwordx4 v{vL16}, {srd(S_WS)}, s{src_sgpr} offen offset:{1024*q} sc1 lds", tag=tag, track=track)
def dma_block(lds0, src_base_txt, per_wave_kb, tag="dma"):
    a(f"s_mul_i32 s{sPF2}, s{sW}, {per_wave_kb*1024}\n{src_base_txt}\ns_add_u32 s{sPF}, s{sPF}, s{sPF2}\ns_add_u32 s{sPF2}, s{sPF2}, {lds0}")
    for g in range(per_wave_kb // 4):
        dma4(sPF2, sPF, tag=tag)
        if g < per_wave_kb//4 - 1: a(f"s_add_u32 s{sPF}, s{sPF}, 4096\ns_add_u32 s{sPF2}, s{sPF2}, 4096")

def poll(k, grp, mode, with_dbg=False, wave=0, barrier=True):
    lab = a.newlabel("L_pskip"); lp = a.newlabel("L_poll")
    save = list(a.vmq)
    a(f"s_cmp_lg_u32 s{sW}, {wave}\ns_cbranch_scc1 {lab}")
    if mode == "R":
        a(f"""
        v_lshrrev_b32 v{t}, 1, v{L}
        v_and_b32 v{t+1}, 15, v{t}
        v_lshrrev_b32 v{t}, 4, v{t}
        v_lshlrev_b32 v{t}, 3, v{t}
        v_xor_b32 v{t}, s{sJ}, v{t}
        v_lshl_add_u32 v{t}, v{t}, 4, v{t+1}
        v_lshlrev_b32 v{t}, 7, v{t}
        v_and_b32 v{t+1}, 1, v{L}
        v_lshl_add_u32 v{t}, v{t+1}, 3, v{t}
        s_mov_b32 s{sT0}, {k*16*2048}
        s_or_b32 s{sT1}, s{sJ}, 1
        s_lshl_b32 s{sT1}, s{sT1}, 11
        v_lshlrev_b32 v{t+1}, 7, v{I}
        v_add_u32 v{t+1}, s{sT1}, v{t+1}
        """)
    elif mode == "KV":
        a(f"""
        v_lshlrev_b32 v{t}, 7, v{I}
        v_add_u32 v{t}, 16, v{t}
        v_and_b32 v{t+1}, 1, v{G}
        v_lshl_add_u32 v{t}, v{t+1}, 11, v{t}
        s_and_b32 s{sT0}, s{sJ}, 14
        s_add_u32 s{sT0}, s{sT0}, {k*16}
        s_lshl_b32 s{sT0}, s{sT0}, 11
        v_mov_b32 v{t+5}, -1
        v_subrev_u32 v{t+6}, 1, v{t+1}
        """)
    else:
        a(f"""
        v_lshrrev_b32 v{t}, 2, v{L}
        v_lshlrev_b32 v{t}, 7, v{t}
        v_lshl_add_u32 v{t}, v{CB}, 3, v{t}
        s_add_u32 s{sT0}, s{grp}, {k*16}
        s_lshl_b32 s{sT0}, s{sT0}, 11
        """)
    a(f"s_mov_b32 s{sPOLL}, 0")
    if mode == "A":
        a(f"v_cmp_gt_u32 vcc, 2, v{CB}\nv_cndmask_b32 v{t+5}, -1, 0, vcc\nv_cmp_eq_u32 vcc, 0, v{CB}\nv_cndmask_b32 v{t+6}, -1, 0, vcc")
    a.label(lp)
    a(f"buffer_load_dwordx2 {vr(t+2,2)}, v{t}, {srd(S_WS)}, s{sT0} offen sc1", track=False)
    if with_dbg: a(f"buffer_load_dword v{t+4}, v{t+1}, {srd(S_DBG)}, 0 offen sc1", track=False)
    if mode == "R": a(f"buffer_load_dword v{t+4}, v{t+1}, {srd(S_WS)}, s{sT0} offen offset:16 sc1", track=False)
    a(f"s_add_u32 s{sPOLL}, s{sPOLL}, 1\ns_waitcnt vmcnt(0)")
    a(f"v_xor_b32 v{t+2}, s{sEP}, v{t+2}\nv_xor_b32 v{t+3}, s{sEP}, v{t+3}")
    if mode in ("A", "KV"): a(f"v_and_b32 v{t+2}, v{t+2}, v{t+5}\nv_and_b32 v{t+3}, v{t+3}, v{t+6}")
    a(f"v_or_b32 v{t+2}, v{t+2}, v{t+3}")
    if mode == "R": a(f"v_xor_b32 v{t+4}, s{sEP}, v{t+4}\nv_or_b32 v{t+2}, v{t+2}, v{t+4}")
    a(f"""
    v_cmp_eq_u32 vcc, 0, v{t+2}
    s_cmp_gt_u32 s{sPOLL}, 200000
    s_cbranch_scc1 {lab}
    s_cmp_eq_u64 vcc, exec
    s_cbranch_scc0 {lp}
    """)
    a.label(lab)
    a.vmq = save
    if barrier: a("s_barrier")

def assemble(nat, skip_hi_wave=None, base=0, wr=None):
    wr = sRW if wr is None else wr
    a(f"s_lshl_b32 s{sT0}, s{wr}, 12\ns_add_u32 s{sT0}, s{sT0}, {base}\nv_lshlrev_b32 v{t}, 8, v{vWA+3}\nv_lshl_add_u32 v{t}, v{vWA+4}, 3, v{t}\nv_add_u32 v{t}, s{sT0}, v{t}\nv_add_u32 v{t+1}, s{sT0}, v{vL16}")
    if nat:
        a(f"""
        v_lshl_add_u32 v{t}, v{vWA+1}, 11, v{t}
        v_lshrrev_b32 v{t+2}, 1, v{CB}
        v_lshl_add_u32 v{t}, v{t+2}, 10, v{t}
        v_and_b32 v{t+2}, 1, v{CB}
        v_lshl_add_u32 v{t}, v{t+2}, 7, v{t}
        """)
    else:
        a(f"""
        s_cmp_eq_u32 s{wr}, 1
        s_cselect_b32 s{sT0}, 0, 1
        v_mul_lo_u32 v{t+2}, v{vWA+1}, s{sT0}
        v_lshl_add_u32 v{t}, v{t+2}, 11, v{t}
        v_lshl_add_u32 v{t}, v{CB}, 6, v{t}
        """)
    perm(vRP, vRING)
    for u in range(8):
        off = 16*u if nat else (u>>2)*1024 + (u&3)*16
        a(f"ds_write_b64 v{t}, {vr(vRING+2*u,2)} offset:{off}")
    a("s_waitcnt lgkmcnt(0)")
    for q in range(4): a(f"ds_read_b128 {vr(vRING+16+4*q,4)}, v{t+1} offset:{1024*q}")
    a("s_waitcnt lgkmcnt(0)")
    lf = a.newlabel("L_asf")
    for q in range(4):
        if q == 2 and skip_hi_wave is not None: a(f"s_cmp_eq_u32 s{wr}, {skip_hi_wave}\ns_cbranch_scc1 {lf}")
        a(f"buffer_store_dwordx4 {vr(vRING+16+4*q,4)}, v{vL16}, {srd(S_WS)}, s{sT2} offen sc1", track=False)
        if q < 3: a(f"s_add_u32 s{sT2}, s{sT2}, s{sPF2}")
    a.label(lf)

a(f"""
s_cmp_lt_u32 s{sRW}, 4
s_cbranch_scc1 L_apoll
s_cmp_ge_u32 s{sRW}, 6
s_cbranch_scc1 L_apoll
; waves 4,5
s_and_b32 s{sT0}, s{sJ}, 1
s_sub_u32 s{sT1}, s{sRW}, 4
s_add_u32 s{sT2}, s{sT0}, s{sT1}
s_cmp_eq_u32 s{sT2}, 2
s_cbranch_scc1 L_a45x
s_cmp_eq_u32 s{sT0}, 1
s_cselect_b32 s{sT2}, 2, s{sT1}
s_lshl_b32 s{sT2}, s{sT2}, 16
s_lshr_b32 s{sT1}, s{sJ}, 1
s_mul_i32 s{sT1}, s{sT1}, {192*1024}
s_add_u32 s{sT2}, s{sT2}, s{sT1}
s_lshl_b32 s{sT1}, s{sC}, 10
s_add_u32 s{sT2}, s{sT2}, s{sT1}
s_add_u32 s{sT2}, s{sT2}, {RQ}
s_mov_b32 s{sPF2}, 16384
s_waitcnt vmcnt({XP1})
""")
fstamp(0)
assemble(True)
fstamp(1)
get_epoch()
fstamp(3)
flag_store(4, sJ, sC, sRW)
fstamp(4)
a.label("L_a45x")
a.label("L_apoll")
a.label("L_b0")
a("s_barrier")
def xrd(lo, hi):
    for s_ in range(lo, hi): a(f"ds_read_b128 {vr(vA+4*s_,4)}, v{XRD} offset:{s_*1024}")
    a("s_waitcnt lgkmcnt(0)")
for s in range(XP1, 16): xdma(s, track=False)
a("s_waitcnt vmcnt(0)")
a(f"s_cmp_ge_u32 s{sW}, 4\ns_cbranch_scc1 L_n03")
a.label("L_r03")
a(f"""
s_cmp_ge_u32 s{sW}, 2
s_cbranch_scc1 L_r23
s_mov_b32 s{sT0}, 2752
v_mul_lo_u32 v{g}, v{vWA+2}, s{sT0}
s_xor_b32 s{sT0}, s{sW}, 1
v_mul_lo_u32 v{g+1}, v{vWA+1}, s{sT0}
v_lshl_add_u32 v{g}, v{g+1}, 6, v{g}
v_lshl_add_u32 v{g}, v{CB}, 4, v{g}
s_cmp_eq_u32 s{sW}, 0
s_cselect_b32 s{sT0}, s{sPU}, s{sPH}
s_lshl_b32 s{sT0}, s{sT0}, 6
s_mul_i32 s{sPF}, s{sC}, {32*2752}
s_add_u32 s{sPF}, s{sPF}, s{sT0}
""")
raw4(S_W1, g, 2752)
a("s_branch L_r03e")
a.label("L_r23")
a(f"""
s_lshr_b32 s{sT0}, s{sJ}, 3
s_add_u32 s{sT1}, s{sT0}, s{sW}
s_cmp_eq_u32 s{sT1}, 2
s_cbranch_scc0 L_rw2
v_lshlrev_b32 v{g}, 2, v{vWA+3}
v_lshl_add_u32 v{g}, v{vWA+4}, 4, v{g}
v_lshlrev_b32 v{g}, 10, v{g}
v_lshl_add_u32 v{g}, v{vWA+1}, 6, v{g}
v_lshl_add_u32 v{g}, v{CB}, 4, v{g}
s_lshl_b32 s{sPF}, s{sC}, 15
s_add_u32 s{sPF}, s{sPF}, s{sCOL}
""")
raw4(S_WO, g, 1024)
a("s_branch L_r03e")
a.label("L_rw2")
a(f"""
s_sub_u32 s{sT1}, s{sW}, 1
s_mul_i32 s{sT1}, s{sT1}, s{sT0}
s_lshl_b32 s{sT1}, s{sT1}, 4
s_add_u32 s{sT1}, s{sT1}, s{sC}
v_lshlrev_b32 v{g}, 10, v{vWA+2}
v_lshl_add_u32 v{g}, v{vWA+1}, 6, v{g}
v_lshl_add_u32 v{g}, v{CB}, 4, v{g}
s_lshl_b32 s{sPF}, s{sT1}, 15
s_add_u32 s{sPF}, s{sPF}, s{sCOL}
""")
raw4(S_W2, g, 1024)
a.label("L_r03e")
a.label("L_n03")
xrd(0, 16)
a(f"s_lshl_b32 s{sXR}, s{sW}, 12\ns_add_u32 s{sXR}, s{sXR}, 98304")
a(f"v_mov_b32 v{vS1}, 0\nv_mov_b32 v{vS2}, 0\nv_mov_b32 v{vE+8}, 0\nv_mov_b32 v{vE+9}, 0")
def dots(lo, hi):
    for d in range(lo, hi, 2):
        a(f"v_dot2c_f32_bf16 v{vS1}, s{sONES}, v{vA+d}\nv_dot2c_f32_bf16 v{vS2}, v{vA+d}, v{vA+d}")
        a(f"v_dot2c_f32_bf16 v{vE+8}, s{sONES}, v{vA+d+1}\nv_dot2c_f32_bf16 v{vE+9}, v{vA+d+1}, v{vA+d+1}")
dots(0, 64)
a(f"v_add_f32 v{vS1}, v{vS1}, v{vE+8}\nv_add_f32 v{vS2}, v{vS2}, v{vE+9}")
stats_final()
a(f"v_lshlrev_b32 v{t}, 4, v{G}")
for r in range(4):
    a(f"ds_bpermute_b32 v{vBP+r}, v{t}, v{vS2} offset:{4*r}")
    a(f"ds_bpermute_b32 v{vBP+4+r}, v{t}, v{vS1} offset:{4*r}")
a("s_waitcnt lgkmcnt(0)")
a(f"s_cmp_lg_u32 s{sRW}, 6\ns_cbranch_scc1 L_b1")
fstamp(2)
get_epoch()
fstamp(3)
a(f"v_mov_b32 v{t}, {ZEP}\nv_mov_b32 v{t+1}, s{sEP}\nds_write_b32 v{t}, v{t+1}\ns_waitcnt lgkmcnt(0)")
poll(4, sJ, "KV", wave=2, barrier=False)
fstamp(4)
a.label("L_b1")
a.vmq = []
a("s_barrier")
stamp("b1")
a(f"v_mov_b32 v{t}, {ZEP}\nds_read_b32 v{t+1}, v{t}\ns_waitcnt lgkmcnt(0)\nv_readfirstlane_b32 s{sEP}, v{t+1}")
def wq_dma(lds_tile_sgpr_txt, sec_tile_txt, q0_txt, ngroups):
    a(lds_tile_sgpr_txt + "\n" + sec_tile_txt + "\n" + q0_txt)
    for gi in range(ngroups):
        a(f"""
        s_add_u32 s{sPF}, s{sT2}, {2*gi}
        s_lshl_b32 s{sPF2}, s{sPF}, 10
        s_add_u32 m0, s{sPF2}, s{sT0}
        s_add_u32 s{sPF}, s{sPF}, s{sROT}
        s_and_b32 s{sPF}, s{sPF}, 15
        s_lshl_b32 s{sPF}, s{sPF}, 10
        s_add_u32 s{sPF}, s{sPF}, s{sT1}
        """)
        for q in range(2):
            a(f"buffer_load_dwordx4 v{vL16}, {srd(S_WS)}, s{sPF} offen offset:{1024*q} sc1 lds", tag="dwq")
srcbase = f"s_lshr_b32 s{sT1}, s{sJ}, 1\ns_mul_i32 s{sT1}, s{sT1}, {192*1024}\ns_and_b32 s{sPF}, s{sJ}, 1\ns_lshl_b32 s{sPF}, s{sPF}, 15\ns_add_u32 s{sT1}, s{sT1}, s{sPF}\ns_add_u32 s{sT1}, s{sT1}, {RQ}"
wq_dma(f"s_lshr_b32 s{sT0}, s{sW}, 1\ns_lshl_b32 s{sT0}, s{sT0}, 14",
       srcbase + f"\ns_lshr_b32 s{sPF}, s{sW}, 2\ns_lshl_b32 s{sPF}, s{sPF}, 16\ns_add_u32 s{sT1}, s{sT1}, s{sPF}\ns_lshr_b32 s{sPF}, s{sW}, 1\ns_and_b32 s{sPF}, s{sPF}, 1\ns_lshl_b32 s{sPF}, s{sPF}, 14\ns_add_u32 s{sT1}, s{sT1}, s{sPF}",
       f"s_and_b32 s{sT2}, s{sW}, 1\ns_lshl_b32 s{sT2}, s{sT2}, 3", 4)
wq_dma(f"s_lshr_b32 s{sT0}, s{sW}, 2\ns_lshl_b32 s{sT0}, s{sT0}, 14\ns_add_u32 s{sT0}, s{sT0}, 65536",
       srcbase + f"\ns_add_u32 s{sT1}, s{sT1}, {2*65536}\ns_lshr_b32 s{sPF}, s{sW}, 2\ns_lshl_b32 s{sPF}, s{sPF}, 14\ns_add_u32 s{sT1}, s{sT1}, s{sPF}",
       f"s_and_b32 s{sT2}, s{sW}, 3\ns_lshl_b32 s{sT2}, s{sT2}, 2", 2)
a("s_waitcnt vmcnt(4)\ns_barrier")
stamp("kvstaged")

def colsum(w_lo, w_hi, tile_add=0, flag=False):
    lab = a.newlabel("L_nocs")
    if w_lo > 0: a(f"s_cmp_lt_u32 s{sW}, {w_lo}\ns_cbranch_scc1 {lab}")
    if w_hi < 8: a(f"s_cmp_ge_u32 s{sW}, {w_hi}\ns_cbranch_scc1 {lab}")
    a(f"s_add_u32 s{sT1}, s{sW}, {tile_add & 0xffffffff}")
    a(f"s_lshl_b32 s{sT0}, s{sT1}, 14\nv_add_u32 v{t}, s{sT0}, v{vL16}")
    for q in range(4): a(f"v_mov_b32 v{t+2+q}, s{sONES}")
    for s in range(8): a(f"ds_read_b128 {vr(vRING+4*s,4)}, v{t} offset:{s*1024}", tag=f"cs{s}")
    acc = t + 6
    for s in range(16):
        a.wait_lg(f"cs{s}")
        a(f"v_mfma_f32_16x16x32_bf16 {vr(acc,4)}, {vr(t+2,4)}, {vr(vRING+4*(s%8),4)}, {'0' if s==0 else vr(acc,4)}")
        if s + 8 < 16: a(f"ds_read_b128 {vr(vRING+4*(s%8),4)}, v{t} offset:{(s+8)*1024}", tag=f"cs{s+8}")
    a(f"""
    v_lshlrev_b32 v{t}, 2, v{I}
    s_lshl_b32 s{sT0}, s{sT1}, 6
    s_add_u32 s{sT0}, s{sT0}, {ZCS}
    v_add_u32 v{t}, s{sT0}, v{t}
    ds_write_b32 v{t}, v{acc}
    s_waitcnt lgkmcnt(0)
    """)
    if flag:
        a(f"s_lshl_b32 s{sT0}, s{sT1}, 2\ns_add_u32 s{sT0}, s{sT0}, {ZFL}\nv_mov_b32 v{t}, s{sT0}\nv_mov_b32 v{t+1}, 1\nds_write_b32 v{t}, v{t+1}\ns_waitcnt lgkmcnt(0)")
    a.label(lab)

colsum(4, 8, -4, flag=True)
frags = []
for s_ in range(16):
    for t_ in range(4):
        frags.append((vL16, t_*16384 + s_*1024, vACC+4*t_, vA+4*s_, False, s_ == 0, None))
mfma_loop(frags)
stamp("kvloop")
save = list(a.vmq)
a(f"s_cmp_ge_u32 s{sW}, 4\ns_cbranch_scc1 L_norf")
a.label("L_a03")
a(f"""
s_lshr_b32 s{sT0}, s{sJ}, 3
s_mul_i32 s{sT2}, s{sJ}, {96*1024}
s_lshl_b32 s{sT1}, s{sC}, 10
s_add_u32 s{sT2}, s{sT2}, s{sT1}
s_lshl_b32 s{sT1}, s{sW}, 16
s_add_u32 s{sT2}, s{sT2}, s{sT1}
s_add_u32 s{sT2}, s{sT2}, {RW1}
s_mov_b32 s{sPF2}, 16384
s_cmp_lt_u32 s{sW}, 2
s_cbranch_scc1 L_rpdst
s_mov_b32 s{sPF2}, 1024
s_add_u32 s{sT1}, s{sT0}, s{sW}
s_lshl_b32 s{sT2}, s{sJJ}, 16
s_lshl_b32 s{sPF}, s{sC}, 12
s_add_u32 s{sT2}, s{sT2}, s{sPF}
s_add_u32 s{sT2}, s{sT2}, {RWO}
s_cmp_eq_u32 s{sT1}, 2
s_cbranch_scc1 L_rpdst
s_sub_u32 s{sT1}, s{sW}, 1
s_mul_i32 s{sT1}, s{sT1}, s{sT0}
s_lshl_b32 s{sT1}, s{sT1}, 4
s_add_u32 s{sT1}, s{sT1}, s{sC}
s_min_u32 s{sT1}, s{sT1}, 43
s_lshl_b32 s{sT1}, s{sT1}, 12
s_mul_i32 s{sT2}, s{sJJ}, {RW2S}
s_add_u32 s{sT2}, s{sT2}, s{sT1}
s_add_u32 s{sT2}, s{sT2}, {RW2}
L_rpdst:
s_waitcnt vmcnt(0)
""")
assemble(False, skip_hi_wave=1, base=131072, wr=sW)
flag_store(4, sJ, sC)
a.label("L_norf")
a.vmq = save
a(f"v_lshlrev_b32 v{t}, 4, v{G}\nv_lshlrev_b32 v{t+1}, 2, v{I}\nv_add_u32 v{t+1}, {ZCS}, v{t+1}")
a(f"""
v_mov_b32 v{vE+20}, {ZFL}
s_mov_b32 s{sPOLL}, 0
L_csw:
ds_read_b128 {vr(vE+16,4)}, v{vE+20}
s_add_u32 s{sPOLL}, s{sPOLL}, 1
s_cmp_gt_u32 s{sPOLL}, 100000
s_cbranch_scc1 L_cswx
s_waitcnt lgkmcnt(0)
v_and_b32 v{vE+16}, v{vE+16}, v{vE+17}
v_and_b32 v{vE+18}, v{vE+18}, v{vE+19}
v_and_b32 v{vE+16}, v{vE+16}, v{vE+18}
v_cmp_ne_u32 vcc, 0, v{vE+16}
s_cbranch_vccz L_csw
L_cswx:
s_waitcnt lgkmcnt(0)
""")
def phi2(r0, r1, t0, t1):
    a(f"""
    v_min_f32 v{t0}, 0, v{r0}
    v_min_f32 v{t1}, 0, v{r1}
    v_mul_f32 v{t0}, 0x3fb8aa3b, v{t0}
    v_mul_f32 v{t1}, 0x3fb8aa3b, v{t1}
    v_exp_f32 v{t0}, v{t0}
    v_exp_f32 v{t1}, v{t1}
    v_max_f32 v{r0}, 0, v{r0}
    v_max_f32 v{r1}, 0, v{r1}
    v_add_f32 v{r0}, 0x358637bd, v{r0}
    v_add_f32 v{r1}, 0x358637bd, v{r1}
    v_add_f32 v{r0}, v{r0}, v{t0}
    v_add_f32 v{r1}, v{r1}, v{t1}
    """)
for tl in range(4): a(f"ds_read_b32 v{vE+16+tl}, v{t+1} offset:{64*tl}", tag="bp")
a(f"v_mov_b32 v{vRING+8}, s{sONES}\nv_mov_b32 v{vRING+9}, s{sONES}")
a(f"v_add_u32 v{vRING+10}, s{sXR}, v{vL16}\nv_add_u32 v{vRING+11}, s{sXR}, v{t}")
a("s_waitcnt lgkmcnt(0)")
for tl in range(4):
    for r in range(4):
        ac = vACC + 4*tl + r
        a(f"v_mul_f32 v{vE+20+r}, v{vBP+4+r}, v{vE+16+tl}")
    for r in range(4):
        ac = vACC + 4*tl + r
        a(f"v_fma_f32 v{ac}, v{ac}, v{vBP+r}, -v{vE+20+r}")
    if tl < 2:
        phi2(vACC+4*tl, vACC+4*tl+1, vE+20, vE+21); phi2(vACC+4*tl+2, vACC+4*tl+3, vE+22, vE+23)
    a(f"v_cvt_pk_bf16_f32 v{vRING+2*tl}, v{vACC+4*tl}, v{vACC+4*tl+1}\nv_cvt_pk_bf16_f32 v{vRING+2*tl+1}, v{vACC+4*tl+2}, v{vACC+4*tl+3}")
for h in range(2):
    a(f"v_mfma_f32_16x16x16_bf16 {vr(vACC+4*h,4)}, {vr(vRING+2*h,2)}, {vr(vRING+4+2*h,2)}, 0")
for h in range(2):
    a(f"v_mfma_f32_16x16x16_bf16 {vr(vACC+8+4*h,4)}, {vr(vRING+2*h,2)}, {vr(vRING+8,2)}, 0")
for h in range(2): a(f"ds_write_b128 v{vRING+10}, {vr(vACC+4*h,4)} offset:{1024*h}")
for h in range(2): a(f"ds_write_b128 v{vRING+11}, {vr(vACC+8+4*h,4)} offset:{2048+64*h}")
a("s_waitcnt vmcnt(0) lgkmcnt(0)\ns_barrier")
save = list(a.vmq)
a(f"""
s_cmp_lt_u32 s{sW}, 3
s_cbranch_scc1 L_nokvred
s_cmp_eq_u32 s{sW}, 3
s_cbranch_scc1 L_zred
v_lshlrev_b32 v{t+1}, 3, v{L}
s_sub_u32 s{sT1}, s{sW}, 4
s_lshl_b32 s{sT1}, s{sT1}, 9
s_add_u32 s{sT0}, s{sT1}, 98304
v_add_u32 v{t}, s{sT0}, v{t+1}
""")
for w8 in range(8): a(f"ds_read_b64 {vr(vRING+2*w8,2)}, v{t} offset:{4096*w8}")
a(f"""
s_lshl_b32 s{sT2}, s{sJ}, 4
s_add_u32 s{sT2}, s{sT2}, s{sC}
s_lshl_b32 s{sT2}, s{sT2}, 11
s_add_u32 s{sT2}, s{sT2}, s{sT1}
s_add_u32 s{sT2}, s{sT2}, {KVP}
s_waitcnt lgkmcnt(0)
""")
for w8 in (1, 3, 5, 7):
    for q in range(2): a(f"v_add_f32 v{vRING+2*(w8-1)+q}, v{vRING+2*(w8-1)+q}, v{vRING+2*w8+q}")
for w8 in (2, 6):
    for q in range(2): a(f"v_add_f32 v{vRING+2*(w8-2)+q}, v{vRING+2*(w8-2)+q}, v{vRING+2*w8+q}")
for q in range(2): a(f"v_add_f32 v{vRING+q}, v{vRING+q}, v{vRING+8+q}")
a(f"buffer_store_dwordx2 {vr(vRING,2)}, v{t+1}, {srd(S_WS)}, s{sT2} offen sc1", track=False)
a("s_branch L_kvflag")
a.label("L_zred")
a(f"""
v_and_b32 v{t+1}, 31, v{L}
v_lshlrev_b32 v{t+1}, 2, v{t+1}
v_add_u32 v{t}, {98304+2048}, v{t+1}
""")
for w8 in range(8): a(f"ds_read_b32 v{vRING+w8}, v{t} offset:{4096*w8}")
a(f"""
s_lshl_b32 s{sT2}, s{sJ}, 4
s_add_u32 s{sT2}, s{sT2}, s{sC}
s_lshl_b32 s{sT2}, s{sT2}, 7
s_add_u32 s{sT2}, s{sT2}, {ZP}
s_waitcnt lgkmcnt(0)
""")
for w8 in range(1, 8): a(f"v_add_f32 v{vRING}, v{vRING}, v{vRING+w8}")
a(f"buffer_store_dword v{vRING}, v{t+1}, {srd(S_WS)}, s{sT2} offen sc1", track=False)
a.label("L_kvflag")
flag_store(0, sJ, sC)
a.label("L_nokvred")
a.vmq = save
poll(4, sJ, "R", wave=0, barrier=False)
colsum(1, 3, 3)
stamp("kvpub")
frags = []
for s in range(16):
    for tq in range(2):
        frags.append((vL16B, tq*16384 + s*1024, vACC+16+4*tq, vA+4*s, True, s == 0, None))
mfma_loop(frags)
a("s_barrier")
dma_block(0, f"s_lshl_b32 s{sPF}, s{sJJ}, 16\ns_add_u32 s{sPF}, s{sPF}, {RWO}", 8, "dwo")
a(f"v_lshlrev_b32 v{t}, 4, v{G}\nv_add_u32 v{t}, {ZCS}, v{t}")
for tq in range(2): a(f"ds_read_b128 {vr(vE+8+4*tq,4)}, v{t} offset:{64*(4+tq)}")
vXR = vA + 32
a(f"""
v_lshlrev_b32 v{t+1}, 10, v{I}
v_lshl_add_u32 v{t+1}, v{G}, 4, v{t+1}
s_lshl_b32 s{sT1}, s{sMT}, 14
s_add_u32 s{sT1}, s{sT1}, s{sCOL}
s_lshl_b32 s{sT2}, s{sKH}, 6
s_add_u32 s{sT1}, s{sT1}, s{sT2}
""")
a(f"buffer_load_dwordx4 {vr(vXR,4)}, v{t+1}, {srd(S_X)}, s{sT1} offen", tag="xr")
a(f"v_lshlrev_b32 v{t+1}, 4, v{G}")
for it, sp, add in ((0, sPU, 0), (1, sPU, 1), (2, sPH, 0)):
    a(f"s_add_u32 s{sT2}, s{sp}, {add}\ns_lshl_b32 s{sT2}, s{sT2}, 6")
    a(f"buffer_load_dwordx4 {vr(vB1+4*it,4)}, v{t+1}, {srd(S_B1)}, s{sT2} offen", tag="b1")
a("s_waitcnt lgkmcnt(0)")
for tq in range(2):
    for r in range(4): a(f"v_mul_f32 v{vE+20+r}, v{vS1}, v{vE+8+4*tq+r}")
    for r in range(4):
        ac = vACC + 16 + 4*tq + r
        a(f"v_fma_f32 v{ac}, v{ac}, v{vS2}, -v{vE+20+r}")
    b = vACC + 16 + 4*tq
    phi2(b, b+1, vE+20, vE+21); phi2(b+2, b+3, vE+22, vE+23)
    a(f"v_cvt_pk_bf16_f32 v{vKEEP+2*tq}, v{b}, v{b+1}\nv_cvt_pk_bf16_f32 v{vKEEP+2*tq+1}, v{b+2}, v{b+3}")
stamp("qdone")

a(f"""
s_lshl_b32 s{sT2}, s{sJ}, 15
s_and_b32 s{sT1}, s{sW}, 1
s_lshl_b32 s{sT1}, s{sT1}, 10
s_add_u32 s{sT2}, s{sT2}, s{sT1}
s_lshr_b32 s{sT1}, s{sW}, 1
s_lshl_b32 s{sT1}, s{sT1}, 13
s_add_u32 s{sT2}, s{sT2}, s{sT1}
s_add_u32 s{sT2}, s{sT2}, {KVP}
""")
poll(0, sJ, "A")
stamp("syncA")
for c in range(4):
    a(f"buffer_load_dwordx4 {vr(vRING+4*c,4)}, v{vL16}, {srd(S_WS)}, s{sT2} offen offset:{(c%2)*2048} sc1", tag="kvp")
    if c == 1: a(f"s_add_u32 s{sT2}, s{sT2}, 4096")
save = list(a.vmq)
a(f"""
s_cmp_lg_u32 s{sW}, 7
s_cbranch_scc1 L_noz
s_lshl_b32 s{sT2}, s{sJ}, 11
s_add_u32 s{sT2}, s{sT2}, {ZP}
""")
a(f"buffer_load_dwordx4 {vr(vRING+16,4)}, v{vL16}, {srd(S_WS)}, s{sT2} offen sc1", track=False)
a(f"buffer_load_dwordx4 {vr(vRING+20,4)}, v{vL16}, {srd(S_WS)}, s{sT2} offen offset:1024 sc1", track=False)
a("s_waitcnt vmcnt(0)")
for q in range(4): a(f"v_add_f32 v{vRING+16+q}, v{vRING+16+q}, v{vRING+20+q}")
for q in range(4): a(f"v_add_f32_dpp v{vRING+16+q}, v{vRING+16+q}, v{vRING+16+q} row_ror:8 row_mask:0xf bank_mask:0xf")
for swap in ("v_permlane32_swap_b32", "v_permlane16_swap_b32"):
    for q in range(4): a(f"v_mov_b32 v{vRING+20+q}, v{vRING+16+q}")
    for q in range(4): a(f"{swap} v{vRING+16+q}, v{vRING+20+q}")
    for q in range(4): a(f"v_add_f32 v{vRING+16+q}, v{vRING+16+q}, v{vRING+20+q}")
a(f"""
v_cvt_pk_bf16_f32 v{vRING+20}, v{vRING+16}, v{vRING+17}
v_cvt_pk_bf16_f32 v{vRING+21}, v{vRING+18}, v{vRING+19}
v_and_b32 v{t}, 7, v{L}
v_lshlrev_b32 v{t}, 3, v{t}
v_add_u32 v{t}, {ZZ}, v{t}
ds_write_b64 v{t}, {vr(vRING+20,2)}
""")
a.label("L_noz")
a.vmq = save
a(f"s_lshl_b32 s{sT0}, s{sW}, 10\ns_add_u32 s{sT0}, s{sT0}, {KVS}\nv_add_u32 v{t}, s{sT0}, v{vL16}\nv_add_u32 v{t+1}, {KVS}, v{vL16}")
a.wait_vm("kvp")
for q in range(4): a(f"v_add_f32 v{vRING+q}, v{vRING+q}, v{vRING+4+q}\nv_add_f32 v{vRING+8+q}, v{vRING+8+q}, v{vRING+12+q}")
for q in range(4): a(f"v_add_f32 v{vRING+q}, v{vRING+q}, v{vRING+8+q}")
a(f"ds_write_b128 v{t}, {vr(vRING,4)}\ns_waitcnt lgkmcnt(0)\ns_barrier")
for q in range(8): a(f"ds_read_b128 {vr(vRING+4*q,4)}, v{t+1} offset:{1024*q}")
a(f"v_lshlrev_b32 v{t}, 3, v{G}\nv_add_u32 v{t}, {ZZ}, v{t}")
for h in range(2): a(f"ds_read_b64 {vr(vE+12+2*h,2)}, v{t} offset:{32*h}")
a(f"""
s_lshl_b32 s{sT2}, s{sC}, 3
s_add_u32 s{sT2}, s{sT2}, s{sWM}
s_lshl_b32 s{sT2}, s{sT2}, 4
s_add_u32 s{sT2}, s{sT2}, s{sJ}
s_lshl_b32 s{sT2}, s{sT2}, 10
s_add_u32 s{sT2}, s{sT2}, {OFR}
s_waitcnt lgkmcnt(0)
""")
for h in range(2):
    a(f"v_mfma_f32_16x16x16_bf16 {vr(vACC+8+4*h,4)}, {vr(vE+12+2*h,2)}, {vr(vKEEP+2*h,2)}, 0")
for q in range(8): a(f"v_add_f32 v{vRING+q}, v{vRING+q}, v{vRING+8+q}\nv_add_f32 v{vRING+16+q}, v{vRING+16+q}, v{vRING+24+q}")
for q in range(8): a(f"v_add_f32 v{vRING+q}, v{vRING+q}, v{vRING+16+q}")
for h in range(2):
    a(f"v_cvt_pk_bf16_f32 v{vRING+8+2*h}, v{vRING+4*h}, v{vRING+4*h+1}\nv_cvt_pk_bf16_f32 v{vRING+9+2*h}, v{vRING+4*h+2}, v{vRING+4*h+3}")
for h in range(2):
    a(f"v_mfma_f32_16x16x16_bf16 {vr(vACC+4*h,4)}, {vr(vRING+8+2*h,2)}, {vr(vKEEP+2*h,2)}, 0")
for h in range(2):
    a(f"v_add_f32 v{vE+8+h}, 0x358637bd, v{vACC+8+4*h}\nv_rcp_f32 v{vE+8+h}, v{vE+8+h}")
for h in range(2):
    for r in range(4): a(f"v_mul_f32 v{vACC+4*h+r}, v{vACC+4*h+r}, v{vE+8+h}")
    a(f"v_cvt_pk_bf16_f32 v{vE+16+2*h}, v{vACC+4*h}, v{vACC+4*h+1}\nv_cvt_pk_bf16_f32 v{vE+17+2*h}, v{vACC+4*h+2}, v{vACC+4*h+3}")
a(f"buffer_store_dwordx4 {vr(vE+16,4)}, v{vL16}, {srd(S_WS)}, s{sT2} offen sc1")
flag_store(1, sC, sJ)
stamp("opub")
a("s_barrier")
a(f"""
s_lshl_b32 s{sPF2}, s{sW}, 13
s_add_u32 s{sPF2}, s{sPF2}, {24*4096}
s_mul_i32 s{sPF}, s{sJJ}, {RW2S}
s_add_u32 s{sPF}, s{sPF}, s{sPF2}
s_add_u32 s{sPF}, s{sPF}, {RW2}
""")
dma4(sPF2, sPF, tag="dw2y")
a(f"s_cmp_eq_u32 s{sW}, 7\ns_cbranch_scc1 L_now2y\ns_add_u32 s{sPF}, s{sPF}, 4096\ns_add_u32 s{sPF2}, s{sPF2}, 4096")
dma4(sPF2, sPF, track=False)
a.label("L_now2y")
a(f"""
s_lshl_b32 s{sT2}, s{sMT}, 4
s_lshl_b32 s{sT1}, s{sKH}, 3
s_add_u32 s{sT2}, s{sT2}, s{sT1}
s_lshl_b32 s{sT2}, s{sT2}, 10
s_add_u32 s{sT2}, s{sT2}, {OFR}
s_lshl_b32 s{sT1}, s{sKH}, 15
v_add_u32 v{vTMP}, s{sT1}, v{vL16}
s_waitcnt vmcnt(0)
""")
poll(1, sC, "8")
stamp("syncB")
for q in range(8):
    a(f"buffer_load_dwordx4 {vr(vA+4*q,4)}, v{vL16}, {srd(S_WS)}, s{sT2} offen offset:{(q%4)*1024} sc1", tag=f"o{q}")
    if q == 3: a(f"s_add_u32 s{sT2}, s{sT2}, 4096")
frags = []
for q in range(8):
    for tl in range(4):
        frags.append((vTMP, (q*4+tl)*1024, vACC+4*tl, vA+4*q, True, q == 0, f"o{q}" if tl == 0 else None))
mfma_loop(frags)
def exchange(base):
    l0 = a.newlabel("L_ex0"); l1 = a.newlabel("L_ex1")
    a(f"""
    s_lshl_b32 s{sT0}, s{sW}, 11
    s_add_u32 s{sT0}, s{sT0}, {base}
    v_add_u32 v{t}, s{sT0}, v{vL16}
    s_xor_b32 s{sT1}, s{sW}, 4
    s_lshl_b32 s{sT1}, s{sT1}, 11
    s_add_u32 s{sT1}, s{sT1}, {base}
    v_add_u32 v{t+1}, s{sT1}, v{vL16}
    s_nop 4
    s_cmp_eq_u32 s{sKH}, 0
    s_cbranch_scc0 {l0}
    """)
    a(f"ds_write_b128 v{t}, {vr(vACC+8,4)}\nds_write_b128 v{t}, {vr(vACC+12,4)} offset:1024", track=False)
    for q in range(8): a(f"v_mov_b32 v{vACC+16+q}, v{vACC+q}")
    a(f"s_branch {l1}")
    a.label(l0)
    a(f"ds_write_b128 v{t}, {vr(vACC,4)}\nds_write_b128 v{t}, {vr(vACC+4,4)} offset:1024", track=False)
    for q in range(8): a(f"v_mov_b32 v{vACC+16+q}, v{vACC+8+q}")
    a.label(l1)
    a("s_waitcnt lgkmcnt(0)\ns_barrier")
    a(f"ds_read_b128 {vr(vACC,4)}, v{t+1}\nds_read_b128 {vr(vACC+4,4)}, v{t+1} offset:1024\ns_waitcnt lgkmcnt(0)")
    for q in range(8): a(f"v_add_f32 v{vACC+16+q}, v{vACC+16+q}, v{vACC+q}")
exchange(65536)
def add_resid(src, dst):
    for d in range(4):
        x0 = vE + 8 + 2*(d & 1)
        a(f"""
        v_lshlrev_b32 v{x0}, 16, v{src+d}
        v_and_b32 v{x0+1}, 0xffff0000, v{src+d}
        v_add_f32 v{x0}, v{x0}, v{vACC+16+2*d}
        v_add_f32 v{x0+1}, v{x0+1}, v{vACC+17+2*d}
        v_cvt_pk_bf16_f32 v{dst+d}, v{x0}, v{x0+1}
        """)
add_resid(vXR, vKEEP)
a(f"""
s_lshr_b32 s{sT1}, s{sCOL}, 6
s_add_u32 s{sT1}, s{sT1}, s{sKH}
s_lshl_b32 s{sT2}, s{sMT}, 4
s_add_u32 s{sT2}, s{sT2}, s{sT1}
s_lshl_b32 s{sT2}, s{sT2}, 10
s_add_u32 s{sT2}, s{sT2}, {HFR}
""")
a(f"buffer_store_dwordx4 {vr(vKEEP,4)}, v{vL16}, {srd(S_WS)}, s{sT2} offen sc1")
a(f"v_mov_b32 v{vE+8}, 0\nv_mov_b32 v{vE+9}, 0")
for d in range(4):
    a(f"v_dot2c_f32_bf16 v{vE+8}, s{sONES}, v{vKEEP+d}\nv_dot2c_f32_bf16 v{vE+9}, v{vKEEP+d}, v{vKEEP+d}")
greduce(vE+8, vE+9)
a(f"""
v_lshlrev_b32 v{t}, 3, v{I}
s_lshl_b32 s{sT2}, s{sMT}, 11
s_lshl_b32 s{sT1}, s{sT1}, 7
s_add_u32 s{sT2}, s{sT2}, s{sT1}
s_add_u32 s{sT2}, s{sT2}, {HST}
s_mov_b64 s[{sEX}:{sEX+1}], exec
s_mov_b64 exec, 0xffff
""")
a(f"buffer_store_dwordx2 {vr(vE+8,2)}, v{t}, {srd(S_WS)}, s{sT2} offen sc1")
a(f"s_mov_b64 exec, s[{sEX}:{sEX+1}]")
flag_store(2, sC, sJ)
stamp("hpub")
a("s_barrier")
dma_block(0, f"s_mul_i32 s{sPF}, s{sJ}, {96*1024}\ns_add_u32 s{sPF}, s{sPF}, {RW1}", 12, "dw1")
a(f"""
s_lshl_b32 s{sT2}, s{sC}, 3
s_add_u32 s{sT2}, s{sT2}, s{sW}
s_lshl_b32 s{sXO}, s{sT2}, 11
s_add_u32 s{sXO}, s{sXO}, {HST}
s_lshl_b32 s{sT2}, s{sT2}, 14
s_add_u32 s{sT2}, s{sT2}, {HFR}
v_lshlrev_b32 v{vTMP}, 3, v{I}
v_lshl_add_u32 v{vTMP}, v{G}, 9, v{vTMP}
s_waitcnt vmcnt(0)
s_barrier
""")
colsum(1, 7, -1)
poll(2, sC, "8")
stamp("syncC")
for q in range(4): a(f"buffer_load_dwordx2 {vr(vE+16+2*q,2)}, v{vTMP}, {srd(S_WS)}, s{sXO} offen offset:{128*q} sc1", tag="hst")
hl = []
for s in range(16):
    pre = f"s_add_u32 s{sPF}, s{sPF}, 4096\n" if (s % 4 == 0 and s > 0) else ""
    hl.append((pre + f"buffer_load_dwordx4 {vr(vA+4*s,4)}, v{vL16}, {srd(S_WS)}, s{sPF} offen offset:{(s%4)*1024} sc1", f"h{s}"))
a(f"s_mov_b32 s{sPF}, s{sT2}")
for _ in range(PD): txt, tg = hl.pop(0); a(txt, tag=tg)
a(f"v_lshlrev_b32 v{vTMP}, 4, v{G}\nv_add_u32 v{vTMP}, {ZCS}, v{vTMP}")
a.wait_vm("hst")
a(f"""
v_add_f32 v{vS1}, v{vE+16}, v{vE+18}
v_add_f32 v{vS2}, v{vE+17}, v{vE+19}
v_add_f32 v{vE+20}, v{vE+20}, v{vE+22}
v_add_f32 v{vE+21}, v{vE+21}, v{vE+23}
v_add_f32 v{vS1}, v{vS1}, v{vE+20}
v_add_f32 v{vS2}, v{vS2}, v{vE+21}
""")
for aa in range(2): a(f"ds_read_b128 {vr(vE+16+4*aa,4)}, v{vTMP} offset:{64*aa}", tag="cs0")
stats_final()
a(f"s_lshl_b32 s{sXO}, s{sC}, 3\ns_add_u32 s{sXO}, s{sXO}, s{sW}\ns_mul_i32 s{sXO}, s{sXO}, 43")
def epi3(p, csbase):
    def chain(aa, r):
        ac = vACC + 4*(2*p+aa) + r
        bsrc = vB1 + 4*p + 2*aa + (r >> 1)
        x0, x1, x2 = vE+8+3*(r&1), vE+9+3*(r&1), vE+10+3*(r&1)
        cs = csbase + 4*aa + r
        return [f"v_lshlrev_b32 v{x0}, 16, v{bsrc}" if r % 2 == 0 else f"v_and_b32 v{x0}, 0xffff0000, v{bsrc}",
            f"v_fma_f32 v{x0}, -v{vS1}, v{cs}, v{x0}",
            f"v_fma_f32 v{ac}, v{ac}, v{vS2}, v{x0}",
            f"v_mul_f32 v{x1}, 0x3fb8aa3b, v{ac}",
            f"v_min_f32 v{x1}, 0x42200000, v{x1}",
            f"v_exp_f32 v{x1}, v{x1}",
            f"v_add_f32 v{x2}, 2.0, v{x1}",
            f"v_mul_f32 v{x1}, v{x1}, v{x2}",
            f"v_add_f32 v{x2}, 2.0, v{x1}",
            f"v_rcp_f32 v{x2}, v{x2}",
            f"v_mul_f32 v{ac}, v{ac}, v{x1}",
            f"v_mul_f32 v{ac}, v{ac}, v{x2}"]
    out = []
    for aa in range(2):
        for r in (0, 2):
            c0, c1 = chain(aa, r), chain(aa, r+1)
            for x, y in zip(c0, c1): out += [x, y]
    for d in range(4):
        b = vACC + 8*p + 2*d
        out.append(f"v_cvt_pk_bf16_f32 v{vACC+8*p+d}, v{b}, v{b+1}")
    return out
def epi3_store(p):
    sp, add = ((sPU, 0), (sPU, 1), (sPH, 0))[p]
    a(f"s_add_u32 s{sT2}, s{sp}, s{sXO}\ns_add_u32 s{sT2}, s{sT2}, {add}\ns_lshl_b32 s{sT2}, s{sT2}, 10\ns_add_u32 s{sT2}, s{sT2}, {AFR}")
    a(f"buffer_store_dwordx4 {vr(vACC+8*p,4)}, v{vL16}, {srd(S_WS)}, s{sT2} offen sc1")
frags = []
for s in range(16):
    for tl in range(4):
        frags.append((vL16, tl*16384 + s*1024, vACC+4*tl, vA+4*s, True, s == 0, f"h{s}" if tl == 0 else None))
nA = len(frags)
for s in range(16):
    for tl in range(4, 6):
        frags.append((vL16B, (tl-4)*16384 + s*1024, vACC+4*tl, vA+4*s, True, s == 0, None))
e0 = epi3(0, vE+16)
extra = {}
for f in range(nA + 3, len(frags)):
    extra[f] = [e0.pop(0) for _ in range(2) if e0]
mfma_loop(frags, extra, al=hl)
stamp("p3loop")
for p in (1, 2):
    for aa in range(2):
        a(f"ds_read_b128 {vr(vRING+8*(p-1)+4*aa,4)}, v{vTMP} offset:{64*(2*p+aa)}", tag=f"cs{p}")
for e in e0: a(e)
epi3_store(0)
for p in (1, 2):
    a.wait_lg(f"cs{p}")
    for e in epi3(p, vRING+8*(p-1)): a(e)
    epi3_store(p)
flag_store(3, sC, sJ)
stamp("apub")
a("s_barrier")
dma_block(0, f"s_mul_i32 s{sPF}, s{sJJ}, {RW2S}\ns_add_u32 s{sPF}, s{sPF}, {RW2}", 12, "dw2x")
a(f"""
s_mul_i32 s{sT2}, s{sMT}, 43
s_lshl_b32 s{sT2}, s{sT2}, 10
s_add_u32 s{sT2}, s{sT2}, {AFR}
s_add_u32 s{sPF2}, s{sW}, 39
s_lshl_b32 s{sPF2}, s{sPF2}, 12
s_mul_i32 s{sPF}, s{sJJ}, {RW2S}
s_add_u32 s{sPF}, s{sPF}, s{sPF2}
s_add_u32 s{sPF}, s{sPF}, {RW2}
s_lshr_b32 s{sPF2}, s{sW}, 1
s_mul_i32 s{sPF2}, s{sPF2}, 20
s_and_b32 s{sT1}, s{sW}, 1
s_add_u32 s{sPF2}, s{sPF2}, s{sT1}
s_lshl_b32 s{sPF2}, s{sPF2}, 12
s_waitcnt vmcnt(0)
""")
poll(3, sC, "8")
stamp("syncD")
a(f"s_cmp_eq_u32 s{sKH}, 0\ns_cbranch_scc0 L_p4k1")
def p4(kh):
    ks = list(range(20)) + [39, 40] if kh == 0 else list(range(20, 39)) + [41, 42]
    slot = {39: 0, 40: 1, 41: 20, 42: 21}
    n = len(ks)
    cur = 0
    al = []
    for q, k in enumerate(ks):
        pre = ""
        while k*1024 - cur >= 4096:
            step = ((k*1024 - cur) // 4096) * 4096
            pre += f"s_add_u32 s{sT2}, s{sT2}, {step}\n"; cur += step
        al.append((pre + f"buffer_load_dwordx4 {vr(vA+4*q,4)}, v{vL16}, {srd(S_WS)}, s{sT2} offen offset:{k*1024-cur} sc1", f"a{q}"))
    for _ in range(PD): txt, tg = al.pop(0); a(txt, tag=tg)
    def mk(qs, first):
        fr = []
        for q in qs:
            sl = slot.get(ks[q], ks[q])
            for tl in range(4):
                off = sl*4096 + tl*1024
                fr.append(((vL16, vL16B, vL16C)[off >> 16], off & 0xffff, vACC+4*tl, vA+4*q, True, first and q == 0, f"a{q}" if tl == 0 else None))
        return fr
    mfma_loop(mk(range(0, 8), True), al=al)
    a("s_waitcnt lgkmcnt(0)\ns_barrier")
    if kh == 0: dma4(sPF2, sPF, tag="dov")
    mfma_loop(mk(range(8, n-2), False), al=al)
    a("s_waitcnt vmcnt(0) lgkmcnt(0)\ns_barrier")
    mfma_loop(mk(range(n-2, n), False))
vmq_save = list(a.vmq)
p4(0)
a("s_branch L_p4done")
a.label("L_p4k1")
a.vmq = list(vmq_save)
p4(1)
a.label("L_p4done")
a("s_nop 7")
stamp("p4loop")
exchange(8192)
add_resid(vKEEP, vE+12)
a(f"""
v_lshlrev_b32 v{t}, 10, v{I}
v_lshl_add_u32 v{t}, v{G}, 4, v{t}
s_lshl_b32 s{sT1}, s{sMT}, 14
s_add_u32 s{sT1}, s{sT1}, s{sCOL}
s_lshl_b32 s{sT2}, s{sKH}, 6
s_add_u32 s{sT1}, s{sT1}, s{sT2}
""")
a(f"buffer_store_dwordx4 {vr(vE+12,4)}, v{t}, {srd(S_OUT)}, s{sT1} offen")
if "--dbgtime" in sys.argv:
    a(f"""
    s_waitcnt vmcnt(0)
    s_memrealtime s[{sT0+1}:{sT0+2}]
    s_waitcnt lgkmcnt(0)
    s_sub_u32 s{sT1}, s{sT1}, s{sEP}
    v_mov_b32 v{t}, s{sT1}
    s_mov_b64 exec, 1
    buffer_atomic_umax v{t}, v{vZERO}, {srd(S_DBG)}, 0 offen offset:8
    """)
if STAMPS:
    a("s_waitcnt vmcnt(0)")
    stamp("end")
    a("s_memtime s[96:97]\ns_waitcnt lgkmcnt(0)\ns_sub_u32 s96, s96, s98")
    a(f"""
    s_lshl_b32 s{sT0}, s2, 10
    s_lshl_b32 s{sT1}, s{sW}, 7
    s_add_u32 s{sT0}, s{sT0}, s{sT1}
    s_add_u32 s{sT0}, s{sT0}, {STAMP}
    s_mov_b64 exec, 1
    """)
    a(f"v_mov_b32 v{vE+8}, s100\nbuffer_store_dword v{vE+8}, v{vZERO}, {srd(S_WS)}, s{sT0} offen offset:124\ns_nop 1")
    a(f"v_mov_b32 v{vE+8}, s96\nbuffer_store_dword v{vE+8}, v{vZERO}, {srd(S_WS)}, s{sT0} offen offset:120\ns_nop 1")
    for n in range(nstamp[0]):
        a(f"v_mov_b32 v{vE+8}, s{64+2*n}\nbuffer_store_dword v{vE+8}, v{vZERO}, {srd(S_WS)}, s{sT0} offen offset:{4*n}\ns_nop 1")
a.label("L_end")
a("s_endpgm")
a.raw(f""".section .rodata,"a"
.p2align 6
.amdhsa_kernel {KNAME}
  .amdhsa_next_free_vgpr 256
  .amdhsa_next_free_sgpr 102
  .amdhsa_accum_offset 256
  .amdhsa_group_segment_fixed_size 0
  .amdhsa_kernarg_size 80
  .amdhsa_user_sgpr_count 2
  .amdhsa_user_sgpr_kernarg_segment_ptr 1
  .amdhsa_system_sgpr_workgroup_id_x 1
.end_amdhsa_kernel""")
open(OUTF, "w").write(a.text())
print("stamps:", nstamp[0], stamp_names)
```
